```python
import torch

def _softmax(x, axis=-1):
    return torch.softmax(x, dim=axis)
def _gelu(x):
    return torch.nn.functional.gelu(x, approximate="tanh")
def _silu(x):
    return torch.nn.functional.silu(x)
def _sigmoid(x):
    return torch.sigmoid(x)
def _layernorm(x, axis=-1, eps=1e-5):
    m = x.mean(dim=axis, keepdim=True)
    v = x.var(dim=axis, keepdim=True, unbiased=False)
    return (x - m) / torch.sqrt(v + eps)
def _scatter_add(tgt, idx, src, axis=0):
    return tgt.clone().index_add_(axis, idx, src)
def _segment_sum(src, seg, n):
    out = torch.zeros((n,) + src.shape[1:], dtype=src.dtype)
    return out.index_add_(0, seg, src)
def _pad(x, pw):
    flat = tuple(v for pair in reversed(pw) for v in pair)
    return torch.nn.functional.pad(x, flat)

kernel_name = 'gated_mix__compressed_kv_cla__ssm_conv_s5__prompt'

def setup_inputs():

    _w = (lambda a: (lambda t: t.to(torch.bfloat16) if t.is_floating_point() else t)(torch.as_tensor(a)))
    def _A_setup():
        B, H, Sq, Sk, D, M = 1, 32, 2048, 2048, 128, 512
        Dc = 4 * D
        return {
            "x": _w((lambda *s: torch.randn(*s, dtype=torch.bfloat16) * 0.05)(B, Sq, M)),
            "c_kv": _w((lambda *s: torch.randn(*s, dtype=torch.bfloat16) * 0.4)(B, Sk, Dc)),
            "w_q": _w((lambda *s: torch.randn(*s, dtype=torch.bfloat16) * 6.4)(M, H, D) * (M ** -0.5)),
            "w_uk": _w((lambda *s: torch.randn(*s, dtype=torch.bfloat16) * 6.4)(Dc, H, D) * (Dc ** -0.5)),
            "w_uv": _w((lambda *s: torch.randn(*s, dtype=torch.bfloat16) * 0.4)(Dc, H, D) * (Dc ** -0.5)),
            "w_o": _w((lambda *s: torch.randn(*s, dtype=torch.bfloat16) * 0.4)(H, D, M) * ((H * D) ** -0.5)),
        }
    _A_in = _A_setup()

    def _B_setup():
        B, S, D = 1, 2048, 512
        P = D
        Lambda_re = -0.5 * (lambda _x: torch.exp(torch.as_tensor(_x)))((lambda *s: torch.randn(*s, dtype=torch.bfloat16) * 0.4)(P))
        Lambda_im = (lambda *s: torch.randn(*s, dtype=torch.bfloat16) * 0.4)(P) * 1.0
        B_re = (lambda *s: torch.randn(*s, dtype=torch.bfloat16) * 0.4)(P, D) * (D ** -0.5)
        B_im = (lambda *s: torch.randn(*s, dtype=torch.bfloat16) * 0.4)(P, D) * (D ** -0.5)
        C_re = (lambda *s: torch.randn(*s, dtype=torch.bfloat16) * 0.4)(D, P) * (P ** -0.5)
        C_im = (lambda *s: torch.randn(*s, dtype=torch.bfloat16) * 0.4)(D, P) * (P ** -0.5)
        log_dt = (lambda *s: torch.randn(*s, dtype=torch.bfloat16) * 0.4)(P) * 0.3 - 2.0
        Dskip = (lambda *s: torch.randn(*s, dtype=torch.bfloat16) * 0.05)(D)
        return {
            "x": _w((lambda *s: torch.randn(*s, dtype=torch.bfloat16) * 0.05)(B, S, D)),
            "Lambda_re": _w(Lambda_re),
            "Lambda_im": _w(Lambda_im),
            "B_re": _w(B_re),
            "B_im": _w(B_im),
            "C_re": _w(C_re),
            "C_im": _w(C_im),
            "log_dt": _w(log_dt),
            "Dskip": _w(Dskip),
        }
    _B_in = _B_setup()

    return {
        "A_x": _A_in["x"],
        "A_c_kv": _A_in["c_kv"],
        "A_w_q": _A_in["w_q"],
        "A_w_uk": _A_in["w_uk"],
        "A_w_uv": _A_in["w_uv"],
        "A_w_o": _A_in["w_o"],
        "B_x": _B_in["x"],
        "B_Lambda_re": _B_in["Lambda_re"],
        "B_Lambda_im": _B_in["Lambda_im"],
        "B_B_re": _B_in["B_re"],
        "B_B_im": _B_in["B_im"],
        "B_C_re": _B_in["C_re"],
        "B_C_im": _B_in["C_im"],
        "B_log_dt": _B_in["log_dt"],
        "B_Dskip": _B_in["Dskip"],
        "gate_w": _w((lambda *s: torch.randn(*s, dtype=torch.bfloat16) * 0.05)(512) * 16.0),
    }

def reference(A_x, A_c_kv, A_w_q, A_w_uk, A_w_uv, A_w_o, B_x, B_Lambda_re, B_Lambda_im, B_B_re, B_B_im, B_C_re, B_C_im, B_log_dt, B_Dskip, gate_w):
    def _A_ref(x, c_kv, w_q, w_uk, w_uv, w_o):
        B, Sq, M = x.shape[0], x.shape[1], x.shape[2]
        Sk = c_kv.shape[1]
        H, D = w_q.shape[1], w_q.shape[2]
        q = torch.einsum("bqm,mhd->bhqd", x, w_q)
        k = torch.einsum("bkc,chd->bhkd", c_kv, w_uk)
        v = torch.einsum("bkc,chd->bhkd", c_kv, w_uv)
        scores = torch.einsum("bhqd,bhkd->bhqk", q, k) * (D ** -0.5)
        off = Sk - Sq
        qi = torch.arange(Sq)[:, None]
        kj = torch.arange(Sk)[None, :]
        cmask = kj <= (qi + off)
        scores = torch.where(cmask[None, None], scores, -1e9)
        p = _softmax(scores, axis=-1)
        ctx = torch.einsum("bhqk,bhkd->bhqd", p, v)
        return torch.einsum("bhqd,hdm->bqm", ctx, w_o)

    def _B_ref(x, Lambda_re, Lambda_im, B_re, B_im, C_re, C_im, log_dt, Dskip):
        Bsz, L, H = x.shape
        Lam = Lambda_re + 1j * Lambda_im
        Bmat = B_re + 1j * B_im
        Cmat = C_re + 1j * C_im
        dt = torch.exp(log_dt)
        Lam_bar = torch.exp(dt * Lam)
        B_bar = ((Lam_bar - 1.0) / Lam)[:, None] * Bmat
        Bu = torch.einsum("bld,pd->blp", x + 0j, B_bar)
        h = torch.zeros_like(Bu[:, 0, :])
        hs = []
        for t in range(L):
            h = Lam_bar[None, :] * h + Bu[:, t, :]
            hs.append(h)
        hseq = torch.stack(hs, 1)
        y = 2.0 * torch.einsum("blp,dp->bld", hseq, Cmat).real + x * Dskip[None, None, :]
        return y

    x = A_x
    g = _sigmoid((x * gate_w).sum(-1, keepdims=True))
    a = _A_ref(x, A_c_kv, A_w_q, A_w_uk, A_w_uv, A_w_o)
    b = _B_ref(x, B_Lambda_re, B_Lambda_im, B_B_re, B_B_im, B_C_re, B_C_im, B_log_dt, B_Dskip)
    return g * a + (1 - g) * b
```

```python
import re, sys
def vr(base, n=1):
    if base >= 256:
        b = base - 256
        assert b + n <= 256
        return f"a{b}" if n == 1 else f"a[{b}:{b+n-1}]"
    assert base + n <= 256, (base, n)
    return f"v{base}" if n == 1 else f"v[{base}:{base+n-1}]"
def sr(base, n=1):
    return f"s{base}" if n == 1 else f"s[{base}:{base+n-1}]"

_tok = re.compile(r"^-?\|?([vas])(\d+)\|?$|^-?\|?([vas])\[(\d+):(\d+)\]\|?$")
def regs_of(op):
    op = op.strip()
    if op == "vcc": return {("s", 106), ("s", 107)}
    if op == "vcc_lo": return {("s", 106)}
    if op == "vcc_hi": return {("s", 107)}
    if op == "m0": return {("s", 124)}
    if op == "exec": return {("s", 126), ("s", 127)}
    m = _tok.match(op)
    if not m: return set()
    if m.group(1):
        k, lo, hi = m.group(1), int(m.group(2)), int(m.group(2))
    else:
        k, lo, hi = m.group(3), int(m.group(4)), int(m.group(5))
    if k == "a": return {("v", 256 + i) for i in range(lo, hi + 1)}
    return {(k, i) for i in range(lo, hi + 1)}
TRANS = ("v_exp_f32", "v_log_f32", "v_rcp_f32", "v_rsq_f32", "v_sqrt_f32", "v_sin_f32", "v_cos_f32")
class Ins:
    def __init__(self, text):
        self.text = text
        t = text.split(";")[0].strip()
        self.label = None
        if t.endswith(":"):
            self.label = t[:-1]; self.op = ""; self.kind = "label"; self.w = set(); self.r = set(); return
        if t.startswith(".") or not t:
            self.op = ""; self.kind = "dir"; self.w = set(); self.r = set(); return
        p = t.split(None, 1)
        op = self.op = p[0]
        rest = p[1] if len(p) > 1 else ""
        rest = re.sub(r"\s(op_sel\w*|neg_\w+):\[[^\]]*\]", "", rest)
        ops = [o.strip() for o in rest.split(",")]
        mods = []
        if ops and ops[-1]:
            q = ops[-1].split()
            ops[-1] = q[0]; mods = q[1:]
        self.mods = mods; self.ops = ops
        R = [regs_of(o) for o in ops]
        U = lambda L: set().union(*L) if L else set()
        self.C = set(); self.AB = set(); self.passes = 0; self.width = 0; self.data = set()
        self.dma = False; self.load = False
        if op.startswith("v_mfma"):
            self.kind = "mfma"; self.w = R[0]; self.AB = R[1] | R[2]; self.C = R[3]; self.r = self.AB | self.C
            self.passes = 8 if "32x32" in op else 4
        elif op.startswith("v_"):
            self.kind = "valu"
            if op.startswith("v_cmp"): self.w = R[0]; self.r = U(R[1:])
            elif op.startswith("v_permlane") and "swap" in op: self.w = R[0] | R[1]; self.r = R[0] | R[1]
            elif "_co_" in op: self.w = R[0] | R[1]; self.r = U(R[2:])
            elif op == "v_nop": self.w = set(); self.r = set()
            else:
                self.w = R[0]; self.r = U(R[1:])
                if op.startswith(("v_fmac", "v_mac", "v_dot2c", "v_pk_fmac")) or "dpp" in op or any(m.startswith(("row_", "quad_", "wave_")) for m in mods): self.r |= R[0]
            self.dpp = any(m.startswith(("row_", "quad_", "wave_")) for m in mods)
        elif op.startswith("ds_"):
            self.kind = "ds"
            if op.startswith(("ds_read", "ds_bperm", "ds_perm", "ds_swizzle")): self.w = R[0]; self.r = U(R[1:]); self.load = True
            else: self.w = set(); self.r = U(R)
        elif op.startswith(("buffer_", "global_")):
            self.kind = "vmem"
            if "lds" in mods: self.w = set(); self.r = U(R) | {("s", 124)}; self.dma = True
            elif "_load" in op: self.w = R[0]; self.r = U(R[1:]); self.load = True
            elif "_inv" in op or "wbl2" in op: self.w = set(); self.r = set()
            else:
                self.w = set(); self.r = U(R)
                self.data = R[0] if op.startswith("buffer_") else R[1]
                self.width = len(self.data)
        elif op.startswith("s_"):
            self.kind = "salu"
            if op.startswith(("s_load", "s_memtime", "s_memrealtime", "s_buffer_load")):
                self.kind = "smem"; self.w = R[0]; self.r = U(R[1:])
            elif op.startswith(("s_cmp", "s_waitcnt", "s_barrier", "s_nop", "s_cbranch", "s_branch", "s_endpgm", "s_sleep", "s_setprio", "s_bitcmp")):
                self.w = set(); self.r = U(R)
            else:
                self.w = R[0]; self.r = U(R[1:])
                if "saveexec" in op: self.w |= regs_of("exec")
        else:
            raise ValueError(text)
    def states(self):
        if self.kind in ("label", "dir"): return 0
        if self.op == "s_nop": return int(self.ops[0]) + 1
        return 1

def need(p, c):
    n = 0
    if p.kind == "mfma":
        big = 8 if p.passes == 4 else 12
        if c.kind == "mfma":
            if p.w & c.AB: n = max(n, big)
            if (p.w & c.C) and not (p.w == c.C and p.passes == c.passes): n = max(n, big - 2)
            if (p.w & c.w) and not (p.w == c.w and p.passes == c.passes): n = max(n, big - 2)
        elif c.kind in ("valu", "ds", "vmem"):
            if p.w & (c.r | c.w): n = max(n, big)
        if c.kind == "valu" and (p.C & c.w): n = max(n, 3 if p.passes == 4 else 7)
    elif p.kind == "valu":
        vw = {x for x in p.w if x[0] == "v"}; sw = p.w - vw
        if c.kind == "mfma" and (vw & c.r): n = max(n, 2)
        if c.kind == "valu":
            if p.op.startswith(TRANS) and (vw & c.r): n = max(n, 1)
            if c.op.startswith("v_permlane") and (vw & c.r): n = max(n, 2)
            if c.dpp and (vw & c.r): n = max(n, 2)
            if c.op.startswith(("v_readfirstlane", "v_readlane")) and (vw & c.r): n = max(n, 1)
            if sw & c.r: n = max(n, 2)
            if p.op.startswith("v_dot") and (vw & (c.r | c.w)):
                if not (p.op == c.op and not (vw & set().union(*[regs_of(o) for o in c.ops[1:3]]))): n = max(n, 3)
        if c.kind in ("vmem", "ds") and p.op.startswith("v_dot") and (vw & c.r): n = max(n, 3)
        if c.kind == "vmem" and (sw & c.r): n = max(n, 5)
        if c.op.startswith("s_cbranch_vcc") and (sw & regs_of("vcc")): n = max(n, 1)
    elif p.kind == "salu":
        if (("s", 124) in p.w) and c.kind == "vmem" and c.dma: n = max(n, 1)
    elif p.kind == "vmem":
        if p.width >= 3 and (p.data & c.w) and c.kind in ("valu", "mfma", "ds", "vmem"): n = max(n, 2)
    return n

class Asm:
    def __init__(self): self.ins = []
    def __call__(self, s):
        for l in s.strip("\n").split("\n"):
            l = l.strip()
            if l: self.ins.append(Ins(l))
    def label(self, name): self.ins.append(Ins(name + ":"))
    def _cfg(self):
        lab = {x.label: i for i, x in enumerate(self.ins) if x.label}
        pred = [[] for _ in self.ins]; succ = [[] for _ in self.ins]
        for i, x in enumerate(self.ins):
            if x.op.startswith(("s_cbranch", "s_branch")):
                t = lab[x.ops[0]]; pred[t].append(i); succ[i].append(t)
            if x.op not in ("s_branch", "s_endpgm") and i + 1 < len(self.ins):
                pred[i + 1].append(i); succ[i].append(i + 1)
        return pred, succ
    def fix_hazards(self, verbose=True):
        total = 0; start = 0
        while True:
            pred, _ = self._cfg()
            ins = []
            for i in range(start, len(self.ins)):
                c = self.ins[i]
                if c.kind in ("label", "dir"): continue
                worst = 0; why = None
                st = [(q, 0) for q in pred[i]]; seen = set()
                while st:
                    q, d = st.pop()
                    if (q, d) in seen or d >= 12: continue
                    seen.add((q, d))
                    p = self.ins[q]
                    if p.kind not in ("label", "dir"):
                        k = need(p, c) - d
                        if k > worst: worst = k; why = p
                    for z in pred[q]: st.append((z, d + p.states()))
                if worst:
                    ins.append((i, worst, why)); break
            if not ins: break
            i, k, why = ins[0]
            if verbose: print(f"  nop {k}: [{why.text}] -> [{self.ins[i].text}]", file=sys.stderr)
            self.ins.insert(i, Ins(f"s_nop {k-1}")); total += k
            start = i
        return total
    def check_waits(self):
        _, succ = self._cfg()
        errs = set(); seen = set()
        st = [(0, (), ())]
        n = 0
        while st:
            i, lg, vm = st.pop()
            while True:
                x = self.ins[i]
                if x.kind == "label":
                    key = (i, lg, vm)
                    if key in seen: break
                    seen.add(key); n += 1
                    assert n < 20000, "state explosion"
                if x.op == "s_waitcnt":
                    t = x.text
                    m = re.search(r"vmcnt\((\d+)\)", t)
                    if m:
                        k = int(m.group(1)); vm = vm[len(vm) - k:] if k < len(vm) else vm
                        if k == 0: vm = ()
                    m = re.search(r"lgkmcnt\((\d+)\)", t)
                    if m:
                        k = int(m.group(1))
                        if k == 0: lg = ()
                        elif not any(e[0] == "smem" for e in lg): lg = lg[len(lg) - k:] if k < len(lg) else lg
                elif x.kind not in ("label", "dir"):
                    use = x.r | x.w
                    for e in lg:
                        if e[1] & use and not (x.kind == "ds" and e[0] == "ds" and not (e[1] & x.r)): errs.add((i, "lgkm", x.text))
                    for e in vm:
                        if e & use and not (x.kind == "vmem" and not (e & x.r)): errs.add((i, "vm", x.text))
                    if x.op == "s_barrier" and any(e[0] == "ds" for e in lg): errs.add((i, "lgkm-at-barrier", x.text))
                    if x.kind == "ds": lg = (lg + (("ds", frozenset(x.w)),))[-40:]
                    elif x.kind == "smem": lg = lg + (("smem", frozenset(x.w)),)
                    elif x.kind == "vmem": vm = (vm + (frozenset(x.w),))[-70:]
                s = succ[i]
                if not s: break
                for z in s[1:]: st.append((z, lg, vm))
                i = s[0]
        for e in sorted(errs): print("WAIT ERROR", e, file=sys.stderr)
        return len(errs)
    def check_scc(self):
        n = 0
        NOS = ("s_mov", "s_waitcnt", "s_barrier", "s_nop", "s_cselect", "s_mul_i32", "s_cbranch", "s_load", "s_mem", "s_setprio", "s_sleep", "s_getpc")
        for i, x in enumerate(self.ins):
            if x.op.startswith(("s_cbranch_scc", "s_cselect")):
                k = i - 1
                while not (self.ins[k].op.startswith("s_") and not self.ins[k].op.startswith(NOS)):
                    if self.ins[k].kind == "label": break
                    k -= 1
                if not self.ins[k].op.startswith(("s_cmp", "s_bitcmp")):
                    print("SCC ERROR", i, x.text, "<-", self.ins[k].text, file=sys.stderr); n += 1
        return n
    def text(self):
        return "\n".join((x.text if x.kind == "label" else "    " + x.text) for x in self.ins) + "\n"

class Sched:
    def __init__(self, mf, cap=2):
        self.mf = mf; n = self.n = len(mf); self.cap = cap
        self.sh = [[] for _ in range(n)]; self.gp = [[] for _ in range(n)]; self.used = [0] * n
        self.quiet = set(); self.post = [[] for _ in range(n)]
    def setquiet(self, g): self.quiet.add(g); self.used[g] += self.cap
    def place(self, ins, g0, g1=None, cost=None):
        if cost is None: cost = 2 if ins.startswith(TRANS) else 1
        g0 = min(max(g0, 0), self.n - 1)
        g1 = self.n - 1 if g1 is None else min(max(g1, g0), self.n - 1)
        for g in range(g0, g1 + 1):
            if self.used[g] + cost <= self.cap: break
        else:
            g = min(range(g0, g1 + 1), key=lambda x: (self.used[x] + (50 if x in self.quiet else 0), x))
        self.used[g] += cost; self.gp[g].append(ins)
        return g
    def scalar(self, ins, g0, g1=None):
        g0 = min(max(g0, 0), self.n - 1)
        g1 = self.n - 1 if g1 is None else min(max(g1, g0), self.n - 1)
        for g in range(g0, g1 + 1):
            if not self.sh[g]: break
        else: g = g1
        self.sh[g].append(ins); return g
    def over(self):
        return sum(max(0, self.used[g] - (2 * self.cap if False else self.cap)) for g in range(self.n)) + sum(max(0, len(s) - 1) for s in self.sh)
    def emit(self, a):
        for g in range(self.n):
            a(self.mf[g])
            for x in self.sh[g]: a(x)
            for x in self.gp[g]: a(x)
            for x in self.post[g]: a(x)

    def autowait(self, entry=(), final=frozenset(), grab=6, final_gap=None):
        q = [(-99, frozenset(e)) for e in entry]
        def addwait(g, need, lst_pre):
            nonlocal q
            idx = [k for k, e in enumerate(q) if e[1] & need]
            if not idx: return
            k = max(idx)
            while k + 1 < len(q) and g - q[k + 1][0] >= grab and k + 1 - max(idx) < 2: k += 1
            cnt = len(q) - 1 - k
            assert cnt <= 15
            q = q[k + 1:]
            for n, x in enumerate(lst_pre):
                if x.startswith("s_waitcnt") and "lgkm" not in x:
                    lst_pre[n] = x + f" lgkmcnt({cnt})"; return
            br = [n for n, x in enumerate(lst_pre) if x.startswith(("s_cbranch", "s_branch", "s_barrier"))]
            lst_pre.insert(br[0] if br else len(lst_pre), f"s_waitcnt lgkmcnt({cnt})")
        fg = self.n - 1 if final_gap is None else final_gap
        for g in range(self.n):
            for x in self.sh[g]:
                m = re.search(r"lgkmcnt\((\d+)\)", x)
                if m:
                    c = int(m.group(1)); q = q[len(q) - c:] if 0 < c < len(q) else ([] if c == 0 else q)
            need = set(Ins(self.mf[g + 1]).r) if g + 1 < self.n else set()
            if g == fg: need |= final
            addwait(g, need, self.sh[g])
            for x in self.gp[g]:
                if x.startswith("ds_"): q.append((g, frozenset(Ins(x).w)))
            if g >= fg: need |= final
            addwait(g, need, self.post[g])
        return [e[1] for e in q]
```

```python
from asmx import *
KV_STRIDE = 0x104000
WS_KV = 0; WS_A = 0x2100000; WS_W = 0x3500000; WS_G = 0x3A00000; WS_E = 0x3A10000; WS_T = 0x3A20000; WS_SIZE = 0x3B00000
SP = 131072
MF = "v_mfma_f32_16x16x32_bf16"
LOG2E = 0x3fb8aa3b
NINF = "0xff800000"
sW, sH, sJ = 3, 4, 5
R_WS, R_C, R_W, R_X, R_Q, R_D, R_T1, R_T2 = 8, 12, 16, 20, 24, 28, 32, 36
sOA, sOW, sMA, sMW, sT, sCnt, sKVst, sOXL, sKVo, sKVm, sFlag, sThr, sT2, sOX, sOQ, sMQ, sDC, sDW = range(40, 58)
sC2 = 58
P_X, P_C, P_WQ, P_WK, P_WV, P_WO, P_BX, P_LRE, P_LIM, P_BRE, P_BIM, P_CRE, P_CIM, P_LDT, P_DSK, P_GATE, P_DBG, P_WS = range(60, 96, 2)
sMask = 64
sAS, sAL, sTS = 96, 97, 98
vL, vL16, vC, vW, vX = 0, 1, 2, 3, 4
RC = [5, 6]; RW = [7, 8, 9, 10]; RB = [11, 12]
vP, vT0, vT1 = 13, 14, 15
A0 = 256
FW = [[A0 + 32 * s + 4 * i for i in range(8)] for s in range(2)]
FC = [[A0 + 64 + 32 * s + 4 * i for i in range(8)] for s in range(2)]
ACC = [16 + 4 * i for i in range(60)] + [A0 + 128 + 4 * i for i in range(4)]
aLAM, aL8, aL128, aCF, aWS, aWL = [A0 + 240 + 2 * i for i in range(6)]

def srd(a, R, P, size):
    a(f"s_mov_b32 s{R}, s{P}\ns_mov_b32 s{R+1}, s{P+1}\ns_mov_b32 s{R+2}, {hex(size)}\ns_mov_b32 s{R+3}, 0x20000")
def dma(v, R, so, imm, sc=""):
    return f"buffer_load_dwordx4 v{v}, s[{R}:{R+3}], s{so} offen" + (f" offset:{imm}" if imm else "") + sc + " lds"

def kv_dmas():
    o = []
    for n in range(8):
        if n % 4 == 0: o.append(f"s_add_u32 m0, s{sMA}, {n*1024}")
        o.append(f"s_add_u32 s{sT}, s{sOA}, {n*8192 - (n%4)*1024}")
        o.append(dma(vC, R_C, sT, (n % 4) * 1024))
    for n in range(8):
        hh, gp, eh = n >> 2, (n >> 1) & 1, n & 1
        if n % 4 == 0: o.append(f"s_add_u32 m0, s{sMW}, {n*1024}")
        o.append(f"s_add_u32 s{sT}, s{sOW}, {(16*gp+4*eh)*8192 + 128*hh - (n%4)*1024}")
        o.append(dma(vW, R_W, sT, (n % 4) * 1024))
    o += [f"s_add_u32 s{sOA}, s{sOA}, 128", f"s_add_u32 s{sOW}, s{sOW}, {64*8192}", f"s_xor_b32 s{sMA}, s{sMA}, 0x10000", f"s_xor_b32 s{sMW}, s{sMW}, 0x10000"]
    return o
def q_dmas(t):
    o = []; buf = (t & 1) * 65536
    for n in range(4):
        gp, eh = n >> 1, n & 1
        if n == 0: o.append(f"s_add_u32 m0, s{sMQ}, {buf}")
        o.append(f"s_add_u32 s{sT}, s{sOQ}, {(64*t+16*gp+4*eh)*8192 - n*1024}")
        o.append(dma(vW, R_Q, sT, n * 1024))
    for n in range(8):
        if n % 4 == 0: o.append(f"s_add_u32 m0, s{sMA}, {buf + n*1024}")
        o.append(f"s_add_u32 s{sT}, s{sOX if n < 4 else sOXL}, {(16*(n%2)+4*((n>>1)&1))*1024 + 128*t - (n%4)*1024}")
        o.append(dma(vX, R_X, sT, (n % 4) * 1024))
    return o
def att_dmas():
    o = []
    for n in range(16):
        if n % 4 == 0: o += [f"s_add_u32 m0, s{sKVm}, {n*1024}", f"s_add_u32 s{sT}, s{sKVo}, {n*1024}"]
        o.append(dma(vL16, R_WS, sT, (n % 4) * 1024, " sc1"))
        if n == 12: o += [f"s_add_u32 s{sKVo}, s{sKVo}, 0x10000", f"s_xor_b32 s{sKVm}, s{sKVm}, 0x10000"]
    return o
def place_seq(S, seq, g0, g1):
    nv = sum(1 for x in seq if not x.startswith("s_")); k = 0; g = g0; out = []; gs = g0
    for x in seq:
        tgt = g0 + (k * (g1 - g0)) // max(nv, 1)
        if x.startswith("s_"):
            assert gs < S.n
            gs = S.scalar(x, gs, max(gs, min(max(tgt, g) + 2, S.n - 1)))
            g = max(g, gs + (1 if "m0" in x.split(",")[0] else 0))
        else:
            g = S.place(x, max(g, tgt), max(g, tgt) + 3); out.append(g); k += 1
            gs = g + 1
    return out
def w_reads(st, s):
    o = []
    for a_ in range(8):
        for eh in range(2):
            o.append(f"ds_read_b64_tr_b16 {vr(FW[st][a_]+2*eh,2)}, v{RW[a_%4]} offset:{s*8192+(a_>>2)*4096+eh*1024}")
    return o
def kv_reads(st, s):
    w = w_reads(st, s); o = []
    for b in range(8):
        o += [f"ds_read_b128 {vr(FC[st][b],4)}, v{RC[s]} offset:{b*2048}", w[2*b], w[2*b+1]]
    return o
def q_reads(st, t, s):
    o = [f"ds_read_b128 {vr(FC[st][tt],4)}, v{RC[s]} offset:{tt*2048}" for tt in range(4)]
    o += [f"ds_read_b128 {vr(FC[st][4+c],4)}, v{RB[s]} offset:{t*4096+c*2048}" for c in range(2)]
    return o + w_reads(st, s)
def kv_mf(kind, st):
    o = []
    for i in range(64):
        if kind == 0: A, B = FW[st][i % 8], FC[st][i // 8]
        else: A, B = FC[st][2 * (i // 16) + (i & 1)], FW[st][(i >> 1) & 7]
        o.append(f"{MF} {vr(ACC[i],4)}, {vr(A,4)}, {vr(B,4)}, {vr(ACC[i],4)}")
    return o
def spread(S, L, g0, g1):
    g = g0; out = []
    for n, x in enumerate(L):
        t = max(g, g0 + n * (g1 - g0) // len(L)); g = S.place(x, t, max(t, min(t + 2, g1))); out.append(g)
    return out

def cexp(a, n, zr, zi, dst, t):
    a(f"""v_mul_f32 v{t+2}, {n}, v{zr}
    v_mul_f32 v{t+3}, {n}, v{zi}
    v_exp_f32 v{t+2}, v{t+2}
    v_fract_f32 v{t+3}, v{t+3}
    v_cos_f32 v{t}, v{t+3}
    v_sin_f32 v{t+1}, v{t+3}
    v_mul_f32 v{t}, v{t}, v{t+2}
    v_mul_f32 v{t+1}, v{t+1}, v{t+2}
    v_accvgpr_write_b32 {vr(dst)}, v{t}
    v_accvgpr_write_b32 {vr(dst+1)}, v{t+1}""")

def stamp(a, opt, k):
    if opt.get("ts"):
        a(f"s_memrealtime s[100:101]\ns_waitcnt lgkmcnt(0)\nv_accvgpr_write_b32 a{224+k}, s100")

def prologue(a, opt):
    T = 200
    a(f"""s_cmp_ge_u32 s2, 256
    s_cbranch_scc1 A_end
    s_load_dwordx16 s[60:75], s[0:1], 0
    s_load_dwordx16 s[76:91], s[0:1], 64
    s_load_dwordx4 s[92:95], s[0:1], 136
    v_lshrrev_b32 v1, 6, v0
    v_and_b32 v0, 63, v0
    s_and_b32 s6, s2, 7
    v_readfirstlane_b32 s{sW}, v1
    s_lshr_b32 s7, s2, 6
    s_lshl_b32 s6, s6, 2
    s_add_u32 s{sH}, s6, s7
    s_bfe_u32 s{sJ}, s2, 0x30003
    v_lshlrev_b32 v{vL16}, 4, v0""")
    stamp(a, opt, 0)
    if opt.get("pf", 1):
        a(f"""s_getpc_b64 s[6:7]
        A_pc:
        v_lshlrev_b32 v{T}, 7, v0
        s_lshl_b32 s{sT}, s{sW}, 13
        v_add_u32 v{T}, s{sT}, v{T}
        v_min_u32 v{T}, A_end-A_pc, v{T}
        v_mov_b32 v{T+1}, s7
        v_add_co_u32 v{T}, vcc, s6, v{T}
        v_addc_co_u32 v{T+1}, vcc, 0, v{T+1}, vcc
        global_load_dword v{T+40}, v[{T}:{T+1}], off""")
    a(f"""v_lshrrev_b32 v{T}, 3, v0
    v_and_b32 v{T+1}, 6, v{T}
    v_and_b32 v{T+2}, 7, v0
    v_xor_b32 v{T+1}, v{T+1}, v{T+2}
    v_lshlrev_b32 v{T+1}, 4, v{T+1}
    v_lshl_add_u32 v{vC}, v{T}, 10, v{T+1}
    v_and_b32 v{T+2}, 4, v{T}
    v_add_u32 v{T}, v{T}, v{T+2}
    v_lshl_add_u32 v{vX}, v{T}, 10, v{T+1}
    v_lshl_add_u32 v{vW}, v{T}, 13, v{T+1}
    v_and_b32 v{T+3}, 15, v0
    v_lshrrev_b32 v{T+4}, 4, v0
    v_lshlrev_b32 v{T+5}, 4, v{T+4}
    v_lshl_add_u32 v{T+5}, v{T+3}, 10, v{T+5}
    s_lshl_b32 s6, s{sH}, 4
    v_add_u32 v{T+6}, s6, v{T+3}
    v_lshlrev_b32 v{T+6}, 1, v{T+6}
    s_waitcnt lgkmcnt(0)""")
    srd(a, R_T1, P_WO, 4 << 20)
    a(f"s_bitcmp1_b32 s2, 3\ns_cselect_b32 s6, s{P_CIM}, s{P_CRE}\ns_cselect_b32 s7, s{P_CIM+1}, s{P_CRE+1}")
    srd(a, R_T2, 6, 512 << 10)
    srd(a, R_X, P_X, 2 << 20)
    a(f"""s_lshl_b32 s{sMA}, s{sW}, 13
    s_add_u32 m0, s{sMA}, {SP}
    s_lshl_b32 s6, s{sH}, 17
    s_lshl_b32 s7, s{sW}, 15
    s_add_u32 s6, s6, s7
    s_lshl_b32 s7, s{sJ}, 7
    s_add_u32 s6, s6, s7""")
    for n in range(4):
        a(f"s_add_u32 s{sT}, s6, {(16*(n&1)+8*(n>>1))*1024 - n*1024}")
        a(dma(vC, R_T1, sT, n * 1024))
    a(f"""s_and_b32 s6, s2, 7
    s_lshl_b32 s6, s6, 2
    s_add_u32 s6, s6, s{sW}
    s_lshl_b32 s6, s6, 14
    s_lshr_b32 s7, s2, 4
    s_lshl_b32 s7, s7, 6
    s_add_u32 s6, s6, s7
    buffer_load_dwordx4 v[{T+8}:{T+11}], v{T+5}, s[{R_T2}:{R_T2+3}], s6 offen
    s_lshl_b32 s6, s2, 13
    s_lshl_b32 s7, s{sW}, 11
    s_add_u32 s6, s6, s7
    buffer_load_dwordx4 v[{T+12}:{T+15}], v{vL16}, s[{R_X}:{R_X+3}], s6 offen
    buffer_load_dwordx4 v[{T+16}:{T+19}], v{vL16}, s[{R_X}:{R_X+3}], s6 offen offset:1024
    global_load_dwordx4 v[{T+20}:{T+23}], v{vL16}, s[{P_GATE}:{P_GATE+1}]
    global_load_ushort v{T+24}, v{T+6}, s[{P_LRE}:{P_LRE+1}]
    global_load_ushort v{T+25}, v{T+6}, s[{P_LIM}:{P_LIM+1}]
    global_load_ushort v{T+26}, v{T+6}, s[{P_LDT}:{P_LDT+1}]""")
    srd(a, R_C, P_C, 2 << 20)
    a(f"s_bitcmp1_b32 s{sW}, 1\ns_cselect_b32 s6, s{P_WV}, s{P_WK}\ns_cselect_b32 s7, s{P_WV+1}, s{P_WK+1}")
    srd(a, R_W, 6, 4 << 20)
    a(f"""s_lshl_b32 s{sOA}, s{sJ}, 18
    s_lshl_b32 s6, s{sW}, 16
    s_add_u32 s{sOA}, s{sOA}, s6
    s_and_b32 s6, s{sW}, 1
    s_lshl_b32 s{sOW}, s6, 18
    s_lshl_b32 s7, s{sH}, 8
    s_add_u32 s{sOW}, s{sOW}, s7
    s_add_u32 s{sMW}, s{sMA}, 0x8000""")
    for st in range(2):
        for x in kv_dmas(): a(x)
    srd(a, R_WS, P_WS, WS_SIZE)
    srd(a, R_Q, P_WQ, 4 << 20)
    srd(a, R_D, P_DBG, 256)
    a(f"""s_lshr_b32 s6, s{sW}, 1
    s_and_b32 s7, s{sW}, 1
    s_lshl_b32 s{sOQ}, s6, 18
    s_lshl_b32 s{sT}, s7, 7
    s_add_u32 s{sOQ}, s{sOQ}, s{sT}
    s_lshl_b32 s{sT}, s{sH}, 8
    s_add_u32 s{sOQ}, s{sOQ}, s{sT}
    s_lshl_b32 s{sMQ}, s{sW}, 12
    s_add_u32 s{sMQ}, s{sMQ}, 0x8000
    s_lshl_b32 s{sOX}, s{sJ}, 2
    s_add_u32 s{sOX}, s{sOX}, s{sW}
    s_sub_u32 s{sOXL}, 63, s{sOX}
    s_mov_b32 s{sAS}, s{sOX}
    s_mov_b32 s{sAL}, s{sOXL}
    s_lshl_b32 s{sOX}, s{sOX}, 15
    s_lshl_b32 s{sOXL}, s{sOXL}, 15
    s_mul_i32 s{sKVo}, s{sH}, {KV_STRIDE}
    s_lshl_b32 s{sT}, s{sJ}, 1
    s_add_u32 s{sT}, s{sT}, s7
    s_lshl_b32 s{sT}, s{sT}, 16
    s_add_u32 s{sKVst}, s{sKVo}, s{sT}
    s_mul_i32 s{sT}, s6, 24576
    s_add_u32 s{sKVst}, s{sKVst}, s{sT}
    s_lshl_b32 s{sKVm}, s{sW}, 14
    s_add_u32 s{sKVo}, s{sKVo}, s{sKVm}
    s_lshl_b32 s{sDW}, s6, 14
    s_lshl_b32 s{sDC}, s7, 14""")
    a(f"""v_and_b32 v{T}, 6, v{T+3}
    v_xor_b32 v{T}, v{T}, v{T+4}
    v_lshlrev_b32 v{T}, 4, v{T}
    v_lshl_add_u32 v{T}, v{T+3}, 7, v{T}
    v_add_u32 v{RB[0]}, {SP}, v{T}
    v_xor_b32 v{RB[1]}, 64, v{RB[0]}
    v_add_u32 v{RC[0]}, s{sDC}, v{T}
    v_xor_b32 v{RC[1]}, 64, v{RC[0]}
    v_bfe_u32 v{T}, v0, 2, 3
    v_and_b32 v{T+1}, 3, v0
    v_lshlrev_b32 v{T+1}, 3, v{T+1}
    v_lshl_add_u32 v{T+1}, v{T}, 7, v{T+1}
    v_lshrrev_b32 v{T+2}, 5, v0
    v_lshl_add_u32 v{T+1}, v{T+2}, 11, v{T+1}
    v_lshrrev_b32 v{T}, 1, v{T}
    v_lshl_add_u32 v{T+1}, v{T}, 5, v{T+1}
    s_add_u32 s6, s{sDW}, 0x8000
    s_lshl_b32 s7, s{sW}, 13
    s_add_u32 s7, s7, {SP}""")
    for p in range(4):
        a(f"v_xor_b32 v{T}, {32*p}, v{T+1}\nv_add_u32 v{RW[p]}, s6, v{T}\nv_add_u32 v{T+28+p}, s7, v{T}")
    a(f"""s_lshl_b32 s6, s{sW}, 13
    s_sub_u32 s{sDC}, s6, s{sDC}
    s_sub_u32 s{sDC}, s{sDC}, 0x10000
    s_sub_u32 s{sDW}, 0xffff0000, s{sDW}""")
    for i in range(16, T): a(f"v_mov_b32 v{i}, 0")
    for i in range(128, 144): a(f"v_accvgpr_write_b32 a{i}, 0")
    a("s_waitcnt vmcnt(32)")
    WT = T + 32
    for p in range(4):
        for eh in range(2): a(f"ds_read_b64_tr_b16 v[{WT+4*p+2*eh}:{WT+4*p+2*eh+1}], v{T+28+p} offset:{eh*1024}")
    a(f"""s_and_b32 s6, s2, 7
    s_mul_i32 s6, s6, 160
    s_lshr_b32 s7, s2, 6
    s_mul_i32 s7, s7, 40
    s_add_u32 s6, s6, s7
    s_add_u32 s6, s6, s{sJ}
    s_add_u32 s6, s6, 32
    s_lshl_b32 s6, s6, 2
    s_add_u32 s6, s6, s{sW}
    s_lshl_b32 s6, s6, 10
    s_add_u32 s6, s6, {WS_W}
    buffer_store_dwordx4 v[{T+8}:{T+11}], v{vL16}, s[{R_WS}:{R_WS+3}], s6 offen
    s_lshr_b32 s6, s{sH}, 3
    s_mul_i32 s6, s6, 40
    s_and_b32 s7, s{sH}, 7
    s_lshl_b32 s7, s7, 2
    s_add_u32 s{sTS}, s6, s7
    s_add_u32 s6, s{sTS}, s{sW}
    s_mul_i32 s7, s{sJ}, 160
    s_add_u32 s6, s6, s7
    s_lshl_b32 s6, s6, 12
    s_add_u32 s6, s6, {WS_W}
    s_waitcnt lgkmcnt(0)""")
    for p in range(4): a(f"buffer_store_dwordx4 v[{WT+4*p}:{WT+4*p+3}], v{vL16}, s[{R_WS}:{R_WS+3}], s6 offen offset:{p*1024}")
    a(f"s_mov_b32 s{R_T1}, s{P_BRE}\ns_mov_b32 s{R_T1+1}, s{P_BRE+1}\ns_mov_b32 s{R_T1+2}, 0x80000\ns_mov_b32 s{R_T2}, s{P_BIM}\ns_mov_b32 s{R_T2+1}, s{P_BIM+1}")
    a(f"s_lshl_b32 s6, s{sH}, 14\ns_lshl_b32 s7, s{sW}, 8\ns_add_u32 s6, s6, s7\ns_lshl_b32 s7, s{sW}, 13")
    for st in range(2):
        for c in range(2):
            a(f"s_add_u32 m0, s7, {SP + st*4096 + c*2048}")
            for hf in range(2):
                a(f"s_add_u32 s{sT}, s6, {st*128 + hf*7168}")
                a(dma(vC, R_T1 if c == 0 else R_T2, sT, hf * 1024))
    for r in range(2):
        d = T + r
        a(f"v_mov_b32 v{d}, 0")
        for q in range(4): a(f"v_dot2_f32_bf16 v{d}, v{T+12+4*r+q}, v{T+20+q}, v{d}")
    for sh in (8, 4, 2, 1):
        for r in range(2): a(f"v_add_f32_dpp v{T+r}, v{T+r}, v{T+r} row_ror:{sh} row_mask:0xf bank_mask:0xf")
    for op in ("v_permlane16_swap_b32", "v_permlane32_swap_b32"):
        for r in range(2): a(f"v_mov_b32 v{T+12+r}, v{T+r}")
        for r in range(2): a(f"{op} v{T+r}, v{T+12+r}")
        for r in range(2): a(f"v_add_f32 v{T+r}, v{T+r}, v{T+12+r}")
    a(f"""v_cmp_eq_u32 vcc, 0, v0
    v_cndmask_b32 v{T}, v{T+1}, v{T}, vcc
    v_mul_f32 v{T}, 0xbfb8aa3b, v{T}
    v_exp_f32 v{T}, v{T}
    v_add_f32 v{T}, 1.0, v{T}
    v_rcp_f32 v{T}, v{T}
    v_lshlrev_b32 v{T+1}, 2, v0
    s_lshl_b32 s6, s2, 5
    s_lshl_b32 s7, s{sW}, 3
    s_add_u32 s6, s6, s7
    s_add_u32 s6, s6, {WS_G}
    s_mov_b64 exec, 3
    buffer_store_dword v{T}, v{T+1}, s[{R_WS}:{R_WS+3}], s6 offen
    s_mov_b64 exec, -1""")
    lre, lim, ldt, zr, zi, t = T + 24, T + 25, T + 26, T + 12, T + 13, T + 14
    a(f"""v_lshlrev_b32 v{lre}, 16, v{lre}
    v_lshlrev_b32 v{lim}, 16, v{lim}
    v_lshlrev_b32 v{ldt}, 16, v{ldt}
    v_mul_f32 v{ldt}, {hex(LOG2E)}, v{ldt}
    v_exp_f32 v{ldt}, v{ldt}
    v_cvt_pk_bf16_f32 v{ldt}, v{ldt}, v{ldt}
    v_lshlrev_b32 v{ldt}, 16, v{ldt}
    v_mul_f32 v{zr}, v{ldt}, v{lre}
    v_mul_f32 v{zi}, v{ldt}, v{lim}
    v_mul_f32 v{zr}, {hex(LOG2E)}, v{zr}
    v_mul_f32 v{zi}, 0.15915494, v{zi}""")
    cexp(a, "1.0", zr, zi, aLAM, t)
    u = T + 18
    a(f"""v_add_f32 v{t}, -1.0, v{t}
    v_mul_f32 v{u}, v{lre}, v{lre}
    v_fma_f32 v{u}, v{lim}, v{lim}, v{u}
    v_rcp_f32 v{u}, v{u}
    v_mul_f32 v{u+1}, v{t}, v{lre}
    v_fma_f32 v{u+1}, v{t+1}, v{lim}, v{u+1}
    v_mul_f32 v{u+2}, v{t+1}, v{lre}
    v_fma_f32 v{u+2}, -v{t}, v{lim}, v{u+2}
    v_add_f32 v{u}, v{u}, v{u}
    v_mul_f32 v{u+1}, v{u+1}, v{u}
    v_mul_f32 v{u+2}, v{u+2}, v{u}
    v_accvgpr_write_b32 {vr(aCF)}, v{u+1}
    v_accvgpr_write_b32 {vr(aCF+1)}, v{u+2}""")
    cexp(a, "0x41000000", zr, zi, aL8, t)
    cexp(a, "0x43000000", zr, zi, aL128, t)
    a(f"""s_lshl_b32 s6, s{sW}, 2
    s_sub_u32 s7, 12, s6
    v_add_u32 v{u}, s6, v{T+4}
    v_add_u32 v{u+1}, s7, v{T+4}
    v_lshlrev_b32 v{u}, 3, v{u}
    v_lshlrev_b32 v{u+1}, 3, v{u+1}
    v_cvt_f32_u32 v{u}, v{u}
    v_cvt_f32_u32 v{u+1}, v{u+1}""")
    cexp(a, f"v{u}", zr, zi, aWS, t)
    cexp(a, f"v{u+1}", zr, zi, aWL, t)
    for i in range(T, 256): a(f"v_mov_b32 v{i}, 0")
    for kt in range(2):
        for qt in range(2):
            for r in range(4):
                m = 0
                for l in range(64):
                    i, g = l & 15, l >> 4
                    if 16 * kt + 4 * g + r <= 8 * (i >> 2) + 4 * qt + (i & 3): m |= 1 << l
                k = sMask + 2 * (kt * 8 + qt * 4 + r)
                a(f"s_mov_b32 s{k}, {hex(m & 0xffffffff)}\ns_mov_b32 s{k+1}, {hex(m >> 32)}")
    a(f"s_mov_b32 s{sC2}, 0x3e0293ee\ns_mov_b32 s{sC2+1}, 0x3e0293ee")
    a(f"s_cmp_eq_u32 s{sW}, 0\ns_cselect_b32 s{sFlag}, 1, 0\ns_mov_b32 s{sCnt}, 6\ns_mov_b32 s99, 0")
    a("s_waitcnt vmcnt(30)\ns_barrier")
    stamp(a, opt, 1)
    for x in kv_reads(0, 0): a(x)
    a(f"s_waitcnt lgkmcnt(0)\ns_cmp_ge_u32 s{sW}, 2\ns_cbranch_scc1 A_kv1")

def kv_k0(S):
    spread(S, kv_reads(1, 1), 0, 52)
def kv_stage(kind, mode):
    S = Sched(kv_mf(kind, 0) + kv_mf(kind, 1))
    for g in (64, 65, 66, 67): S.setquiet(g)
    if mode == "loop": S.setquiet(127)
    kv_k0(S)
    S.place(f"v_xor_b32 v{RC[0]}, 0x10000, v{RC[0]}", 10)
    for p in range(4): S.place(f"v_xor_b32 v{RW[p]}, 0x10000, v{RW[p]}", 58)
    S.place(f"v_xor_b32 v{RC[1]}, 0x10000, v{RC[1]}", 58)
    S.sh[63].append("s_waitcnt lgkmcnt(0)"); S.sh[64].append("s_waitcnt vmcnt(0)"); S.sh[66].append("s_barrier")
    spread(S, kv_reads(0, 0), 68, 118)
    if mode == "loop":
        S.sh[2].append(f"s_sub_u32 s{sCnt}, s{sCnt}, 1")
        S.sh[125].append(f"s_cmp_lg_u32 s{sCnt}, 0"); S.sh[126].append("s_waitcnt lgkmcnt(0)"); S.sh[127].append(f"s_cbranch_scc1 A_kvl{kind}")
        place_seq(S, kv_dmas(), 67, 114)
    else:
        S.sh[127].append("s_waitcnt lgkmcnt(0)")
        place_seq(S, q_dmas(0), 67, 110)
    return S
```

```python
from ka import *
class G: pass
def cmad(dr, di, lr, li, er, ei, xr, xi):
    return [f"v_fma_f32 v{dr}, v{lr}, v{er}, v{xr}", f"v_fma_f32 v{di}, v{lr}, v{ei}, v{xi}",
            f"v_fma_f32 v{dr}, -v{li}, v{ei}, v{dr}", f"v_fma_f32 v{di}, v{li}, v{er}, v{di}"]

def q_region(a, opt):
    Q0 = 128; NQ = 40
    S = Sched(["x"] * (Q0 + 16 * NQ))
    for g in (64, 65, 66, 67): S.setquiet(g)
    S.setquiet(127)
    kv_k0(S)
    S.place(f"v_add_u32 v{RC[0]}, s{sDC}, v{RC[0]}", 10)
    for p in range(4): S.place(f"v_add_u32 v{RW[p]}, s{sDW}, v{RW[p]}", 58)
    S.place(f"v_add_u32 v{RC[1]}, s{sDC}, v{RC[1]}", 58)
    S.sh[63].append("s_waitcnt lgkmcnt(0)"); S.sh[64].append("s_waitcnt vmcnt(0)"); S.sh[66].append("s_barrier")
    S.sh[126].append("s_waitcnt lgkmcnt(0)"); S.sh[127].append("BR")
    lastdma = {}
    lastdma[1] = place_seq(S, q_dmas(1), 67, 92)[-1]
    spread(S, q_reads(0, 0, 0), 68, 118)
    waits = {}; xv = []; PB = opt.get("pub", 3)
    for t in range(8):
        b0 = Q0 + 2 * t * NQ; b1 = b0 + NQ
        S.sh[b1 - 1].append("s_waitcnt lgkmcnt(0)")
        spread(S, q_reads(1, t, 1), b0 + (8 if t == 0 else 0), b0 + 30)
        if t < 7:
            for g in range(b1, b1 + 4): S.setquiet(g)
            waits[t] = b1; S.sh[b1].append("W"); S.sh[b1 + 2].append("s_barrier")
            S.place(f"v_xor_b32 v{RC[0]}, 0x10000, v{RC[0]}", b0 + 2)
            for p in range(4): S.place(f"v_xor_b32 v{RW[p]}, 0x10000, v{RW[p]}", b0 + 34, b0 + 38)
            S.place(f"v_xor_b32 v{RC[1]}, 0x10000, v{RC[1]}", b0 + 34, b0 + 38)
            S.sh[b1 + NQ - 1].append("s_waitcnt lgkmcnt(0)")
            if t == 6:
                pc = b1 + opt.get("pollchk", 6)
                S.sh[pc].append("s_waitcnt vmcnt(0)")
                S.gp[pc].append(f"v_readfirstlane_b32 s{sT2}, v{vP}"); S.used[pc] += 1
                S.sh[pc + 1].append(f"s_cmp_eq_u32 s{sT2}, 8"); S.sh[pc + 2].append("s_cbranch_scc0 A_spin1"); S.sh[pc + 2].append("A_ret1:")
            spread(S, q_reads(0, t + 1, 0), b1 + 4, b1 + 32)
            if t < 6: lastdma[t + 2] = place_seq(S, q_dmas(t + 2), b1 + 3, b1 + 30)[-1]
            if t == 5: xv.append(S.place(f"buffer_load_dword v{vP}, v{vT0}, s[{R_D}:{R_D+3}], 0 offen sc1", lastdma[7] + 1))
            if t == PB:
                g = lastdma[t + 2] + 1; xv.append(g); S.used[g] += 1
                S.sh[g] += [f"s_cmp_eq_u32 s{sFlag}, 1", "s_cbranch_scc1 A_pub1", f"buffer_load_dword v{vP}, v{vL16}, s[{R_X}:{R_X+3}], 0 offen", "A_ret0:"]
            if t == 6: place_seq(S, att_dmas(), pc + 3, pc + 56)
    S.scalar(f"s_lshl_b32 s{sT2}, s{sH}, 3", Q0 + 1, Q0 + 3); S.place(f"v_mov_b32 v{vT0}, s{sT2}", Q0 + NQ + 6); S.place(f"v_mov_b32 v{vT1}, 1", Q0 + NQ + 6)
    free = []
    g = 0; ready = []
    def cv(t0, t1, g0):
        x = S.place(f"v_cvt_pk_bf16_f32 v{t0}, v{t0}, v{t0+1}", g0)
        x = S.place(f"v_cvt_pk_bf16_f32 v{t0+1}, v{t0+2}, v{t0+3}", x)
        x = S.place(f"v_cvt_pk_bf16_f32 v{t0+2}, v{t1}, v{t1+1}", x)
        return S.place(f"v_cvt_pk_bf16_f32 v{t0+3}, v{t1+2}, v{t1+3}", x)
    stpos = []
    def store(pi, t0, g0):
        if pi % 4 == 0:
            lo = (stpos[-1] + 1) if stpos else 60
            g0 = max(g0, S.scalar(f"s_add_u32 s6, s{sKVst}, {(pi//8)*16384 + ((pi%8)//4)*4096}", lo))
        x = S.place(f"buffer_store_dwordx4 v[{t0}:{t0+3}], v{vL16}, s[{R_WS}:{R_WS+3}], s6 offen offset:{(pi%4)*1024} sc1", g0)
        stpos.append(x); free.append((x + 1, t0)); return x
    NE = 12; gs = lastdma[1] + 1; nst = 0
    for pi in range(30):
        g = cv(ACC[2 * pi], ACC[2 * pi + 1], max(g, 64 + 2 * pi + 5))
        free.append((g, ACC[2 * pi + 1])); ready.append(g)
        while nst < NE and nst <= pi and gs <= g:
            gs = store(nst, ACC[2 * nst], max(gs, ready[nst])) + 4; nst += 1
    while nst < NE:
        gs = store(nst, ACC[2 * nst], max(gs, ready[nst])) + 2; nst += 1
    free.sort()
    qt_ = [t for _, t in free[:40]]
    for i in range(40): assert free[i][0] <= Q0 + i - 1, (i, free[i])
    rest = free[40:]
    gs = lastdma[2] + 1
    for pi in range(NE, 22): gs = store(pi, ACC[2 * pi], max(gs, ready[pi])) + 4
    assert gs - 4 < waits[1]
    gs = lastdma[3] + 1
    for pi in range(22, 30): gs = store(pi, ACC[2 * pi], gs) + 3
    tmp = [rest[0][1], rest[1][1], ACC[2 * NE], ACC[2 * NE + 2]]
    g = waits[1] + 4
    for k in range(2):
        for q in range(8): g = S.place(f"v_accvgpr_read_b32 v{tmp[2*k+q//4]+q%4}, {vr(ACC[60+2*k]+q)}", g)
        g = cv(tmp[2 * k], tmp[2 * k + 1], g)
        gs = store(30 + k, tmp[2 * k], max(gs, g)) + 3
    assert gs - 3 < waits[2], (gs, waits[2])
    for t, gw in waits.items():
        n = sum(1 for x in stpos + xv if lastdma[t + 1] < x < gw)
        assert not any(x == lastdma[t + 1] for x in stpos + xv)
        if t == PB: n = 0
        S.sh[gw][S.sh[gw].index("W")] = f"s_waitcnt vmcnt({n})"
    G.BU = [[qt_[4 * c + tt] for tt in range(4)] for c in range(2)]
    G.QA = [[qt_[8 + 4 * a_ + tt] for tt in range(4)] for a_ in range(8)]
    for ks in range(16):
        st = ks & 1; i = Q0 + ks * NQ
        for c in range(2):
            for tt in range(4):
                d = vr(G.BU[c][tt], 4); S.mf[i] = f"{MF} {d}, {vr(FC[st][tt],4)}, {vr(FC[st][4+c],4)}, {d if ks else 0}"; i += 1
        for a_ in range(8):
            for tt in range(4):
                d = vr(G.QA[a_][tt], 4); S.mf[i] = f"{MF} {d}, {vr(FW[st][a_],4)}, {vr(FC[st][tt],4)}, {d if ks else 0}"; i += 1
    used = set(qt_)
    G.FREE1 = [t for t in ACC[:60] if t not in used]
    G.Q = [[G.QA[2 * ks][tt] for ks in range(4)] for tt in range(4)]
    G.FREE2 = [G.QA[2 * ks + 1][tt] for ks in range(4) for tt in range(4)]
    b = Q0 + 15 * NQ
    t0, t1, t2 = G.FREE1[0], G.FREE1[1], G.FREE1[2]
    lr, li = t2, t2 + 1
    S.place(f"v_accvgpr_read_b32 v{lr}, {vr(aLAM)}", b); S.place(f"v_accvgpr_read_b32 v{li}, {vr(aLAM+1)}", b)
    for x in (f"v_and_b32 v{t2+2}, 15, v0", f"v_mul_u32_u24 v{t2+2}, 144, v{t2+2}", f"v_lshrrev_b32 v{t2+3}, 4, v0", f"v_lshl_add_u32 v{t2+2}, v{t2+3}, 3, v{t2+2}"):
        g = S.place(x, b + 1)
    gq = S.scalar(f"s_lshl_b32 s6, s{sW}, 5", b - 8); gq = S.scalar(f"s_sub_u32 s7, {SP + 16*144 + 96}, s6", gq + 1); gq = S.scalar(f"s_add_u32 s6, s6, {SP}", gq + 1)
    assert gq <= g
    g = S.place(f"v_add_u32 v{RB[0]}, s6, v{t2+2}", g + 1); g = S.place(f"v_add_u32 v{RB[1]}, s7, v{t2+2}", g)
    seq = []
    cur = [(G.BU[0][2 * s], G.BU[1][2 * s]) for s in range(2)]
    for k in range(1, 8):
        for s, tb in ((0, t0), (1, t1)):
            d = tb + 2 * (k & 1)
            seq.append(cmad(d, d + 1, lr, li, cur[s][0], cur[s][1], G.BU[0][2 * s + k // 4] + k % 4, G.BU[1][2 * s + k // 4] + k % 4))
            cur[s] = (d, d + 1)
    L = []
    for k in range(0, 14, 2):
        for q in range(0, 4, 2): L += seq[k][q:q + 2] + seq[k + 1][q:q + 2]
    g = b + 11; tail = []
    for x in L:
        if g < S.n - 1 or S.used[g] < 2: g = S.place(x, g)
        else: tail.append(x)
    print("q_region overflow", S.over(), "tail", len(tail), file=sys.stderr)
    for kind in range(2):
        if kind: a.label("A_kv1")
        a(".p2align 3"); a.label(f"A_kvl{kind}")
        kv_stage(kind, "loop").emit(a)
        s6 = kv_stage(kind, "q0"); s6.emit(a)
        m = kv_mf(kind, 0) + kv_mf(kind, 1)
        for g in range(Q0):
            a(m[g])
            for x in S.sh[g]:
                if x == "BR":
                    assert not S.gp[g]
                    if kind == 0: a("s_branch A_q")
                else: a(x)
            for x in S.gp[g]: a(x)
    a.label("A_q")
    stamp(a, opt, 2)
    for g in range(Q0, S.n):
        a(S.mf[g])
        for x in S.sh[g]: a(x)
        for x in S.gp[g]: a(x)
    for x in tail: a(x)
    stamp(a, opt, 3)
    for s in range(2): a(f"ds_write_b64 v{RB[s]}, v[{cur[s][0]}:{cur[s][0]+1}]")

O = lambda s, dt, qt: A0 + 64 * s + 8 * dt + 4 * qt
LS = lambda s, qt: A0 + 128 + 8 * s + 4 * qt
NF = 8; D = 6
FR = lambda i: A0 + 144 + 4 * (i % NF)
ONE = A0 + 176
TF = lambda i: A0 + 180 + 4 * i
vRD = RC[0]; vLO = RW[0]; vHI = RW[1]; vE = RW[2]
def att_alloc():
    f = G.FREE1[3:] + G.FREE2
    G.Z = f.pop(0)
    G.M = [[f.pop(0) for qt in range(2)] for kt in range(2)]
    G.S = [[[f.pop(0) for qt in range(2)] for kt in range(2)] for s in range(2)]
    G.P = [[[f.pop(0) for qt in range(2)] for b in range(2)] for s in range(2)]
    G.X = f + G.FREE1[:3]
def lohi(u):
    return [f"s_cmp_gt_u32 s{sThr}, {u}", f"s_cselect_b32 s6, 0, {NINF}", f"s_cmp_ge_u32 s{sThr}, {u}", f"s_cselect_b32 s7, 0, {NINF}"], [f"v_mov_b32 v{vLO}, s6", f"v_mov_b32 v{vHI}, s7"]
def mprep(kt):
    return [f"v_cndmask_b32 v{G.M[kt][qt]+r}, v{vLO}, v{vHI}, s[{sMask+2*(kt*8+qt*4+r)}:{sMask+2*(kt*8+qt*4+r)+1}]" for qt in range(2) for r in range(4)]
def pv_mf(subs, par, fr):
    o = []
    for dt in range(8):
        for s in subs:
            for qt in range(2): o.append(f"{MF} {vr(O(s,dt,qt),4)}, {vr(fr(dt),4)}, {vr(G.P[s][par][qt],4)}, {vr(O(s,dt,qt),4)}")
    for s in subs:
        for qt in range(2): o.append(f"{MF} {vr(LS(s,qt),4)}, {vr(ONE,4)}, {vr(G.P[s][par][qt],4)}, {vr(LS(s,qt),4)}")
    return o
def slot(a, u, subs, msub=None, pv=True, dmas=(), fin=None, nxt=True, end=(), extra=(), name=""):
    ns = len(subs); mf = []; fu = []
    for kt in range(2):
        for ks in range(4):
            fu.append(len(mf))
            for s in subs:
                for qt in range(2):
                    d = vr(G.S[s][kt][qt], 4)
                    c = d if ks else (vr(G.M[kt][qt], 4) if s == msub else "0")
                    mf.append(f"{MF} {d}, {vr(FR(kt*4+ks),4)}, {vr(G.Q[2*s+qt][ks],4)}, {c}")
    nS = len(mf)
    if pv:
        for dt in range(8): fu.append(nS + 2 * ns * dt)
        mf += pv_mf(subs, (u + 1) & 1, lambda dt: FR(8 + dt))
    S = Sched(mf); n = S.n
    bar = None
    if u == 3:
        bar = fu[16 - D]
        S.setquiet(bar); S.setquiet(bar + 1)
        S.sh[bar - 1].append("s_waitcnt vmcnt(0) lgkmcnt(0)"); S.sh[bar].append("s_barrier")
    if end:
        S.setquiet(n - 1)
        for k, x in enumerate(end): S.sh[n - len(end) - 1 + k if k < len(end) - 1 else n - 1].append(x)
    last = n - 2 if end else n - 1
    ex = lambda s, kt, qt, r: f"v_exp_f32 v{G.S[s][kt][qt]+r}, v{G.S[s][kt][qt]+r}"
    cvt = lambda s, b, kt, qt, h: f"v_cvt_pk_bf16_f32 v{G.P[s][b][qt]+2*kt+h}, v{G.S[s][kt][qt]+2*h}, v{G.S[s][kt][qt]+2*h+1}"
    cv = []
    if pv:
        g = 0
        for r in range(4):
            for s in subs:
                g = S.place(ex(s, 1, 1, r), g, 8 * ns - 3)
                if r & 1: cv.append((cvt(s, (u + 1) & 1, 1, 1, r >> 1), g + 1, 8 * ns - 1))
                g += 2 if r < 3 or ns == 2 else 1
                g = min(g, 8 * ns - 3)
    L = [(s, kt, qt, r) for kt, qt in ((0, 0), (0, 1), (1, 0), (1, 1)) for r in range(4) for s in subs if (kt, qt) != (1, 1) or s == fin]
    tail = []
    if pv:
        g0 = 8 * ns + 3; g1 = last - 1; g = g0
        for k, (s, kt, qt, r) in enumerate(L):
            t = max(g, g0 + k * (g1 - g0) // len(L), nS + 3 if kt else 0)
            g = S.place(ex(s, kt, qt, r), min(t, g1), g1)
            if r & 1: cv.append((cvt(s, u & 1, kt, qt, r >> 1), g + 1, last))
            g += 1
    else:
        g = 8 * ns + 3
        for k, (s, kt, qt, r) in enumerate(L):
            if kt == 0 and g < n - 1:
                g = S.place(ex(s, kt, qt, r), g) + 2
            else: tail.append(ex(s, kt, qt, r))
        for (s, kt, qt, r) in L:
            if r & 1: tail.append(cvt(s, u & 1, kt, qt, r >> 1))
    g = 0
    for i in range(16):
        f = i + D
        if not pv and 8 <= f < 16: continue
        if u == 3 and f >= 16 and not nxt: continue
        if pv: lo = fu[max(i - 1, 0)]; hi = fu[i + 1] - 1 if i < 15 else last
        else: lo = fu[min(i if f < 8 else f - 15, 7)]; hi = lo + 3
        if u == 3:
            if f < 16: hi = min(hi, bar - 5); lo = min(lo, hi)
            else: lo = max(lo, bar + 2)
            if f == 16: S.place(f"v_xor_b32 v{vRD}, 0x10000, v{vRD}", g + 1, bar - 1)
        lo = max(lo, g); hi = max(hi, lo)
        assert not pv or lo >= fu[max(i - 1, 0)] - 1
        g = S.place(f"ds_read_b128 {vr(FR(f),4)}, v{vRD} offset:{((16*u+f)%64)*1024}", lo, hi)
    if fin is not None:
        if not nxt: S.place(f"v_xor_b32 v{vRD}, 0x10000, v{vRD}", g + 1, bar - 1); g = bar + 2
        for dt in range(8): g = S.place(f"ds_read_b128 {vr(TF(dt),4)}, v{vRD} offset:{(8+dt)*1024}", max(g, bar + 2), last)
    for x, lo, hi in cv: S.place(x, lo, min(lo + 3, hi))
    if msub is not None:
        spread(S, mprep(1), 0, 8 * ns - 3)
        if u < 3:
            sc, ve = lohi(u + 1); g = 8 * ns
            if pv:
                S.sh[g] += sc[:2]; S.sh[g + 1] += sc[2:]
                for x in ve: g = S.place(x, g + 1, g + 4)
                spread(S, mprep(0), g + 1, last - 1)
            else: tail += sc + ve + mprep(0)
    S.autowait(entry=[set(), set()] + [regs_of(vr(FR(i), 4)) for i in range(2, D)], final=regs_of(vr(FR(0), 4)) | regs_of(vr(FR(1), 4)) if (nxt or u < 3) else frozenset(), grab=4 * ns, final_gap=(n - 2 if end else n - 1))
    if dmas: place_seq(S, list(dmas), 0, n - 6)
    for x, where in extra:
        if where == "bar": S.sh[bar + 2].append(x)
        else: S.place(x, n // 2)
    if end: assert not S.gp[n - 1] and not S.post[n - 1]
    print(f"slot {name}{u}: n {n} overflow {S.over()} tail {len(tail)}", file=sys.stderr)
    S.emit(a)
    for x in tail: a(x)
def split_dmas(cnt):
    o = [[] for _ in range(4)]; k = 0; c = 0
    for x in att_dmas():
        if c == cnt[k] and k < 3 and cnt[k + 1]: k += 1; c = 0
        o[k].append(x)
        if not x.startswith("s_"): c += 1
    return o
def tail_pv(a, s):
    S = Sched(pv_mf([s], 1, TF))
    a("s_waitcnt lgkmcnt(6)")
    S.autowait(entry=[regs_of(vr(TF(i), 4)) for i in range(2, 8)], grab=0)
    S.emit(a)

def attention(a, opt):
    att_alloc()
    Z = G.Z
    for r in range(4): a(f"v_mov_b32 v{Z+r}, 0")
    L = []
    for ks in range(4):
        for tt in range(4):
            t0, t1 = G.QA[2 * ks][tt], G.QA[2 * ks + 1][tt]
            L += [f"v_pk_mul_f32 v[{t}:{t+1}], v[{t}:{t+1}], s[{sC2}:{sC2+1}]" for t in (t0, t0 + 2, t1, t1 + 2)]
            L += [f"v_cvt_pk_bf16_f32 v{t0}, v{t0}, v{t0+1}", f"v_cvt_pk_bf16_f32 v{t0+1}, v{t0+2}, v{t0+3}", f"v_cvt_pk_bf16_f32 v{t0+2}, v{t1}, v{t1+1}", f"v_cvt_pk_bf16_f32 v{t0+3}, v{t1+2}, v{t1+3}"]
    for k, x in enumerate(L):
        if k % 12 == 4 and k // 12 < 9:
            z = k // 12
            a(f"v_mfma_f32_32x32x16_bf16 a[{16*z}:{16*z+15}], v[{Z}:{Z+3}], v[{Z}:{Z+3}], 0")
        a(x)
    a(f"""v_and_b32 v{vT1}, 3, v0
    v_cmp_eq_u32 vcc, 0, v{vT1}
    v_mov_b32 v{vT1}, 0x3f803f80
    v_mov_b32 v{vRD}, v{vL16}
    v_cndmask_b32 v{vT1}, 0, v{vT1}, vcc
    s_lshl_b32 s{sThr}, s{sJ}, 2
    s_add_u32 s{sThr}, s{sThr}, s{sW}
    s_mov_b32 s{sCnt}, s{sJ}""")
    for r in range(4): a(f"v_accvgpr_write_b32 {vr(ONE+r)}, v{vT1}")
    sc, ve = lohi(0)
    for x in sc + ve + mprep(0): a(x)
    a(f"v_mov_b32 v{vT1}, 1\nv_add_u32 v{vT0}, 4, v{vT0}")
    a("s_waitcnt vmcnt(0) lgkmcnt(0)\ns_barrier")
    stamp(a, opt, 4)
    a(f"s_cmp_eq_u32 s{sW}, 0\ns_cbranch_scc1 A_chain")
    a.label("A_ret2")
    for i in range(D): a(f"ds_read_b128 {vr(FR(i),4)}, v{vRD} offset:{i*1024}")
    a(f"s_waitcnt lgkmcnt({D-2})")
    dm = split_dmas(opt.get("dsplit", [6, 6, 4, 0]))
    pub = [(f"s_cmp_eq_u32 s{sFlag}, 2", "bar")]
    poll = [(f"buffer_load_dword v{vP}, v{vT0}, s[{R_D}:{R_D+3}], 0 offen sc1", "mid")]
    slot(a, 0, [0, 1], msub=0, pv=False, dmas=dm[0], name="P")
    a(f"s_cmp_eq_u32 s{sJ}, 0\ns_cbranch_scc1 A_SD1\ns_branch A_D1")
    a(".p2align 3"); a.label("A_D0")
    for u in range(4):
        if u == 1: a.label("A_D1")
        slot(a, u, [0, 1], dmas=dm[u], name="D",
             end=[f"s_sub_u32 s{sCnt}, s{sCnt}, 1", f"s_cmp_lg_u32 s{sCnt}, 0", "s_cbranch_scc1 A_D0"] if u == 3 else (),
             extra=pub + [("s_cbranch_scc1 A_pub2a", "bar"), ("A_ret2a:", "bar")] if u == 3 else ())
    a(f"s_mov_b32 s{sThr}, s{sW}")
    for x in sc + ve + mprep(0): a(x)
    for u in range(4):
        if u == 1: a.label("A_SD1")
        slot(a, u, [0, 1], msub=0, dmas=dm[u], fin=0 if u == 3 else None, name="SD",
             extra=pub + [("s_cbranch_scc1 A_pub2b", "bar"), ("A_ret2b:", "bar")] if u == 3 else (poll if u == 2 else ()))
    tail_pv(a, 0)
    a(f"s_lshl_b32 s{sCnt}, s{sJ}, 1\ns_sub_u32 s{sCnt}, 14, s{sCnt}\ns_cmp_eq_u32 s{sCnt}, 0\ns_cbranch_scc1 A_LD")
    a(".p2align 3"); a.label("A_G0")
    for u in range(4):
        slot(a, u, [1], dmas=dm[u], name="G", extra=poll if u == 2 else (),
             end=[f"s_sub_u32 s{sCnt}, s{sCnt}, 1", f"s_cmp_lg_u32 s{sCnt}, 0", "s_cbranch_scc1 A_G0"] if u == 3 else ())
    a.label("A_LD")
    stamp(a, opt, 5)
    a(f"""v_readfirstlane_b32 s{sT2}, v{vP}
    s_sub_u32 s{sThr}, 3, s{sW}
    v_and_b32 v{vE}, 15, v0
    v_lshlrev_b32 v{vE}, 7, v{vE}
    s_cmp_eq_u32 s{sT2}, 8
    s_cbranch_scc0 A_spin2""")
    a.label("A_ret3")
    for x in sc + ve + mprep(0): a(x)
    G.E = [G.S[0][0][0], G.S[0][0][1], G.S[0][1][0], G.S[0][1][1], G.P[0][0][0], G.P[0][0][1], G.P[0][1][0], G.P[0][1][1]]
    td = [f"s_mul_i32 s{sT2}, s{sW}, {16384-2048}", f"s_sub_u32 s{sT2}, 8192, s{sT2}", f"s_add_u32 m0, s{sKVm}, s{sT2}", f"s_add_u32 s{sT}, s{sKVo}, s{sT2}",
          dma(vL16, R_WS, sT, 0, " sc1"), dma(vL16, R_WS, sT, 1024, " sc1"), f"s_lshl_b32 s{sT}, s{sH}, 11", f"s_add_u32 s{sT}, s{sT}, {WS_E}"]
    el = [f"buffer_load_dwordx4 v[{G.E[k]}:{G.E[k]+3}], v{vE}, s[{R_WS}:{R_WS+3}], s{sT} offen offset:{16*k} sc1" for k in range(8)]
    dl = [td + el[:2], el[2:5], el[5:], []]
    for u in range(4):
        slot(a, u, [1], msub=1, dmas=dl[u], fin=1 if u == 3 else None, nxt=False, name="LD")
    tail_pv(a, 1)
    stamp(a, opt, 6)
```

```python
from ka2 import *
def epilogue(a, opt):
    X = G.X; E = G.E
    c0, c1, c2 = X[0], X[1], X[2]
    for k, r in enumerate((aLAM, aLAM + 1, aL128, aL128 + 1)): a(f"v_accvgpr_read_b32 v{c0+k}, {vr(r)}")
    for k, r in enumerate((aWS, aWS + 1, aWL, aWL + 1)): a(f"v_accvgpr_read_b32 v{c1+k}, {vr(r)}")
    for k, r in enumerate((aCF, aCF + 1)): a(f"v_accvgpr_read_b32 v{c2+k}, {vr(r)}")
    PF = X[3]; H = X[4]
    for s in range(2): a(f"ds_read_b64 v[{PF+2*s}:{PF+2*s+1}], v{RB[s]}")
    e = lambda c: E[c >> 1] + 2 * (c & 1)
    for r in range(4): a(f"v_mov_b32 v{H+r}, 0")
    for c in range(15):
        if c:
            for x in cmad(e(c), e(c) + 1, c0 + 2, c0 + 3, e(c - 1), e(c - 1) + 1, e(c), e(c) + 1): a(x)
        k, d = (c + 1, H) if c < 7 else (14 - c, H + 2)
        a(f"s_cmp_eq_u32 s{sJ}, {k}\ns_cselect_b64 s[6:7], -1, 0")
        for q in range(2): a(f"v_cndmask_b32 v{d+q}, v{d+q}, v{e(c)+q}, s[6:7]")
    aw, ar, vo = c2 + 2, c2 + 3, vE
    a(f"""s_lshl_b32 s6, s{sW}, 12
    s_add_u32 s6, s6, {SP+8192}
    v_and_b32 v{aw}, 15, v0
    v_lshrrev_b32 v{vLO}, 4, v0
    v_lshlrev_b32 v{aw}, 5, v{aw}
    v_lshl_add_u32 v{aw}, v{vLO}, 3, v{aw}
    v_add_u32 v{aw}, s6, v{aw}
    v_and_b32 v{ar}, 15, v0
    v_lshlrev_b32 v{ar}, 3, v{ar}
    v_lshl_add_u32 v{ar}, v{vLO}, 8, v{ar}
    v_add_u32 v{ar}, s6, v{ar}
    v_lshrrev_b32 v{vLO}, 5, v0
    v_and_b32 v{vo}, 31, v0
    v_lshlrev_b32 v{vo}, 4, v{vo}
    v_lshl_add_u32 v{vo}, v{vLO}, 12, v{vo}
    s_waitcnt lgkmcnt(0)""")
    for s in range(2):
        for x in cmad(PF + 2 * s, PF + 2 * s + 1, c1 + 2 * s, c1 + 2 * s + 1, H + 2 * s, H + 2 * s + 1, PF + 2 * s, PF + 2 * s + 1): a(x)
    cur = [(PF, PF + 1), (PF + 2, PF + 3)]
    for k in range(8):
        sq = []
        for s in range(2):
            xr, xi = G.BU[0][2 * s + k // 4] + k % 4, G.BU[1][2 * s + k // 4] + k % 4
            sq.append(cmad(xr, xi, c0, c0 + 1, cur[s][0], cur[s][1], xr, xi)); cur[s] = (xr, xi)
        for q in (0, 2):
            for s in range(2): a("\n".join(sq[s][q:q + 2]))
    for tt in range(4):
        tr, ti = X[5 + 2 * (tt & 1)], X[6 + 2 * (tt & 1)]
        hr, hi = G.BU[0][tt], G.BU[1][tt]
        for r in range(4): a(f"v_mul_f32 v{tr+r}, v{c2}, v{hr+r}\nv_mul_f32 v{ti+r}, v{c2}, v{hi+r}")
        for r in range(4): a(f"v_fma_f32 v{tr+r}, -v{c2+1}, v{hi+r}, v{tr+r}\nv_fma_f32 v{ti+r}, -v{c2+1}, v{hr+r}, -v{ti+r}")
        for c, t in enumerate((tr, ti)):
            a(f"v_cvt_pk_bf16_f32 v{t}, v{t}, v{t+1}\nv_cvt_pk_bf16_f32 v{t+1}, v{t+2}, v{t+3}\nds_write_b64 v{aw}, v[{t}:{t+1}] offset:{(tt*2+c)*512}")
    for sR, d in ((sAS, sOA), (sAL, sOW)):
        a(f"""s_lshr_b32 s6, s{sR}, 1
        s_mul_i32 s6, s6, 160
        s_add_u32 s6, s6, s{sTS}
        s_lshl_b32 s6, s6, 1
        s_and_b32 s7, s{sR}, 1
        s_add_u32 s6, s6, s7
        s_lshl_b32 s6, s6, 11
        s_add_u32 s{d}, s6, {WS_A}""")
    a(f"""s_and_b32 s6, s{sH}, 6
    s_add_u32 s6, s6, 32
    s_and_b32 s7, s{sH}, 7
    s_lshl_b32 s7, s7, 2
    s_sub_u32 s6, s6, s7
    s_lshl_b32 s6, s6, 12
    s_and_b32 s7, s{sH}, 1
    s_lshl_b32 s7, s7, 9
    s_add_u32 s{sT2}, s6, s7
    s_waitcnt lgkmcnt(0)""")
    for tt in range(4):
        for eh in range(2): a(f"ds_read_b64_tr_b16 v[{E[tt]+2*eh}:{E[tt]+2*eh+1}], v{ar} offset:{tt*1024+eh*128}")
    Lr = X[0]
    def readl():
        for s in range(2):
            for qt in range(2): a(f"v_accvgpr_read_b32 v{Lr+2*s+qt}, {vr(LS(s,qt))}")
    readl()
    a(f"""v_min3_f32 v{vLO}, v{Lr}, v{Lr+1}, v{Lr+2}
    v_add_f32 v{vHI}, v{Lr}, v{Lr+1}
    v_min_f32 v{vLO}, v{vLO}, v{Lr+3}
    v_add_f32 v{vHI}, v{vHI}, v{Lr+2}
    v_add_f32 v{vHI}, v{vHI}, v{Lr+3}
    v_cmp_nle_f32 vcc, {opt.get("lo", "0x2b800000")}, v{vLO}
    s_mov_b64 s[6:7], vcc
    v_cmp_nge_f32 vcc, 0x53800000, v{vHI}
    s_or_b64 vcc, vcc, s[6:7]
    s_waitcnt lgkmcnt(0)""")
    for tt in range(4):
        if tt % 2 == 0: a(f"s_add_u32 s{sT}, s{sOA if tt < 2 else sOW}, s{sT2}")
        a(f"buffer_store_dwordx4 v[{E[tt]}:{E[tt]+3}], v{vo}, s[{R_WS}:{R_WS+3}], s{sT} offen offset:{(tt&1)*1024}")
    a("s_cbranch_vccnz A_fb")
    a.label("A_ret4")
    RL = [X[1], X[2]]
    for s in range(2):
        for qt in range(2): a(f"v_rcp_f32 v{RL[s]+2*qt}, v{Lr+2*s+qt}")
    k = 0
    for s in range(2):
        for s4 in range(4):
            a(f"s_add_u32 s{sT}, s{sOA if s == 0 else sOW}, {s4*4096}")
            for qt in range(2):
                t0, t1 = X[3 + 2 * (k % 6)], X[4 + 2 * (k % 6)]; k += 1
                for q in range(4): a(f"v_accvgpr_read_b32 v{t0+q}, {vr(O(s,2*s4,qt)+q)}\nv_accvgpr_read_b32 v{t1+q}, {vr(O(s,2*s4+1,qt)+q)}")
                rl = RL[s] + 2 * qt
                for t in (t0, t0 + 2, t1, t1 + 2): a(f"v_pk_mul_f32 v[{t}:{t+1}], v[{t}:{t+1}], v[{rl}:{rl+1}] op_sel_hi:[1,0]")
                a(f"v_cvt_pk_bf16_f32 v{t0}, v{t0}, v{t0+1}\nv_cvt_pk_bf16_f32 v{t0+1}, v{t0+2}, v{t0+3}\nv_cvt_pk_bf16_f32 v{t0+2}, v{t1}, v{t1+1}\nv_cvt_pk_bf16_f32 v{t0+3}, v{t1+2}, v{t1+3}")
                a(f"buffer_store_dwordx4 v[{t0}:{t0+3}], v{vL16}, s[{R_WS}:{R_WS+3}], s{sT} offen offset:{qt*1024}")
    if opt.get("ts"):
        stamp(a, opt, 7)
        a(f"s_lshl_b32 s6, s2, 2\ns_add_u32 s6, s6, s{sW}\ns_lshl_b32 s6, s6, 5\ns_add_u32 s6, s6, {WS_T}\nv_mov_b32 v{vLO}, 0\ns_mov_b64 exec, 1")
        a(f"buffer_store_dwordx4 a[224:227], v{vLO}, s[{R_WS}:{R_WS+3}], s6 offen\nbuffer_store_dwordx4 a[228:231], v{vLO}, s[{R_WS}:{R_WS+3}], s6 offen offset:16")
    a("s_endpgm")
    for lab, ret, nf in (("A_pub1", "A_ret0", 2), ("A_pub2a", "A_ret2a", 0), ("A_pub2b", "A_ret2b", 0)):
        a.label(lab)
        a(f"s_mov_b64 exec, 1\nbuffer_atomic_add v{vT1}, v{vT0}, s[{R_D}:{R_D+3}], 0 offen sc1\ns_mov_b64 exec, -1\ns_mov_b32 s{sFlag}, {nf}\ns_branch {ret}")
    for lab, ret in (("A_spin1", "A_ret1"), ("A_spin2", "A_ret3")):
        a.label(lab)
        a(f"""buffer_load_dword v{vP}, v{vT0}, s[{R_D}:{R_D+3}], 0 offen sc1
        s_waitcnt vmcnt(0)
        v_readfirstlane_b32 s{sT2}, v{vP}
        s_cmp_eq_u32 s{sT2}, 8
        s_cbranch_scc1 {ret}
        s_add_u32 s99, s99, 1
        s_cmp_lt_u32 s99, 0x100000
        s_cbranch_scc1 {lab}
        s_branch {ret}""")
    a.label("A_chain")
    T = X[:8]; cc = X[8]; ad = X[9]
    a(f"""v_and_b32 v{ad}, 31, v0
    v_mul_u32_u24 v{ad}, 144, v{ad}
    v_add_u32 v{ad}, {SP}, v{ad}""")
    for k in range(8): a(f"ds_read_b128 v[{T[k]}:{T[k]+3}], v{ad} offset:{16*k}")
    a(f"""v_accvgpr_read_b32 v{cc}, {vr(aL8)}
    v_accvgpr_read_b32 v{cc+1}, {vr(aL8+1)}
    v_mov_b32 v{cc+2}, 0
    v_mov_b32 v{cc+3}, 0
    s_sub_u32 s6, 15, s{sJ}
    v_mov_b32 v{ad+1}, s6
    v_mov_b32 v{ad+2}, s{sJ}
    v_cmp_gt_u32 vcc, 16, v0
    v_and_b32 v{ad+3}, 15, v0
    v_lshlrev_b32 v{ad+3}, 7, v{ad+3}
    v_cndmask_b32 v{ad+1}, v{ad+1}, v{ad+2}, vcc
    v_lshl_add_u32 v{ad+1}, v{ad+1}, 3, v{ad+3}
    s_lshl_b32 s6, s{sH}, 11
    s_add_u32 s6, s6, {WS_E}
    s_waitcnt lgkmcnt(0)
    s_mov_b32 exec_hi, 0
    ds_write_b64 v{ad}, v[{cc+2}:{cc+3}]""")
    t = lambda c: T[c >> 1] + 2 * (c & 1)
    for c in range(16):
        if c:
            for x in cmad(t(c), t(c) + 1, cc, cc + 1, t(c - 1), t(c - 1) + 1, t(c), t(c) + 1): a(x)
        if c < 15: a(f"ds_write_b64 v{ad}, v[{t(c)}:{t(c)+1}] offset:{8*c+8}")
    a(f"buffer_store_dwordx2 v[{t(15)}:{t(15)+1}], v{ad+1}, s[{R_WS}:{R_WS+3}], s6 offen sc1\ns_mov_b64 exec, -1\ns_branch A_ret2")
    a.label("A_fb")
    MX = X[1]; NM = X[2]; NI = X[3]; Z = G.Z
    for r in range(4): a(f"v_mov_b32 v{MX+r}, {NINF}\nv_mov_b32 v{NM+r}, 0\nv_mov_b32 v{Z+r}, 0")
    a(f"v_mov_b32 v{NI}, {NINF}\ns_mov_b32 s{sFlag}, 0")
    a.label("A_fbp")
    a(f"s_mov_b32 s{sCnt}, 0\ns_mul_i32 s{sKVo}, s{sH}, {KV_STRIDE}")
    a.label("A_fbl")
    for f in range(16):
        if f % 4 == 0: a(f"s_add_u32 s{sT}, s{sKVo}, {f*1024 + (16384 if f >= 8 else 0)}")
        a(f"buffer_load_dwordx4 {vr(FR(f) if f < 8 else TF(f-8),4)}, v{vL16}, s[{R_WS}:{R_WS+3}], s{sT} offen offset:{(f%4)*1024} sc1")
    for s in range(2):
        sR = sAS if s == 0 else sAL
        a(f"s_cmp_lt_u32 s{sCnt}, s{sR}\ns_cselect_b64 s[6:7], -1, 0\ns_cmp_le_u32 s{sCnt}, s{sR}\ns_cselect_b64 vcc, -1, 0")
        for qt in range(2):
            a(f"v_cndmask_b32 v{vLO}, v{NI}, v{NM+2*s+qt}, s[6:7]\nv_cndmask_b32 v{vHI}, v{NI}, v{NM+2*s+qt}, vcc")
            for kt in range(2):
                for r in range(4):
                    m = sMask + 2 * (kt * 8 + qt * 4 + r)
                    a(f"v_cndmask_b32 v{G.S[s][kt][qt]+r}, v{vLO}, v{vHI}, s[{m}:{m+1}]")
    a("s_waitcnt vmcnt(0)")
    for kt in range(2):
        for ks in range(4):
            for s in range(2):
                for qt in range(2):
                    d = vr(G.S[s][kt][qt], 4); a(f"{MF} {d}, {vr(FR(kt*4+ks),4)}, {vr(G.Q[2*s+qt][ks],4)}, {d}")
    a(f"s_cmp_eq_u32 s{sFlag}, 0\ns_cbranch_scc0 A_fb2")
    for kt in range(2):
        for s in range(2):
            for qt in range(2):
                t0 = G.S[s][kt][qt]; m = MX + 2 * s + qt
                a(f"v_max3_f32 v{m}, v{t0}, v{t0+1}, v{m}\nv_max3_f32 v{m}, v{t0+2}, v{t0+3}, v{m}")
    a("s_branch A_fb3")
    a.label("A_fb2")
    for kt in range(2):
        for s in range(2):
            for qt in range(2):
                t0 = G.S[s][kt][qt]; p = G.P[s][0][qt] + 2 * kt
                for r in range(4): a(f"v_exp_f32 v{t0+r}, v{t0+r}")
                a(f"v_cvt_pk_bf16_f32 v{p}, v{t0}, v{t0+1}\nv_cvt_pk_bf16_f32 v{p+1}, v{t0+2}, v{t0+3}")
    for x in pv_mf([0, 1], 0, TF): a(x)
    a("s_nop 7")
    a.label("A_fb3")
    a(f"""s_add_u32 s{sKVo}, s{sKVo}, 16384
    s_add_u32 s{sCnt}, s{sCnt}, 1
    s_cmp_le_u32 s{sCnt}, s{sAL}
    s_cbranch_scc1 A_fbl
    s_cmp_eq_u32 s{sFlag}, 0
    s_cbranch_scc0 A_fb4""")
    for op in ("v_permlane16_swap_b32", "v_permlane32_swap_b32"):
        for r in range(4): a(f"v_mov_b32 v{NM+r}, v{MX+r}")
        for r in range(4): a(f"{op} v{MX+r}, v{NM+r}")
        for r in range(4): a(f"v_max_f32 v{MX+r}, v{MX+r}, v{NM+r}")
    for r in range(4): a(f"v_sub_f32 v{NM+r}, 0, v{MX+r}")
    for z in range(9): a(f"v_mfma_f32_32x32x16_bf16 a[{16*z}:{16*z+15}], v[{Z}:{Z+3}], v[{Z}:{Z+3}], 0")
    a(f"s_mov_b32 s{sFlag}, 1\ns_branch A_fbp")
    a.label("A_fb4")
    readl()
    a("s_branch A_ret4")
    a.label("A_end")
    a("s_endpgm")

def kernel_a(opt):
    a = Asm()
    prologue(a, opt); q_region(a, opt); attention(a, opt); epilogue(a, opt)
    return a

def kernel_b(opt):
    a = Asm()
    AA, AB = 16, 80
    acc = lambda base, mt, tt: base + 16 * tt + 4 * mt
    FWb = lambda k, mt: A0 + 32 * (k % 8) + 4 * mt
    FAb = lambda k, tt: A0 + 32 * (k % 8) + 16 + 4 * tt
    sA, sB, sRB, sCB = 40, 41, 42, 43
    a(f"""s_cmp_ge_u32 s2, 256
    s_cbranch_scc1 B_end
    s_load_dwordx2 s[60:61], s[0:1], 0
    s_load_dwordx2 s[62:63], s[0:1], 112
    s_load_dwordx2 s[64:65], s[0:1], 128
    s_load_dwordx2 s[66:67], s[0:1], 144
    v_lshrrev_b32 v1, 6, v0
    v_and_b32 v0, 63, v0
    s_and_b32 s6, s2, 7
    v_readfirstlane_b32 s{sW}, v1
    s_lshr_b32 s7, s2, 6
    s_lshl_b32 s6, s6, 2
    s_add_u32 s{sRB}, s6, s7
    s_bfe_u32 s{sCB}, s2, 0x30003
    v_lshlrev_b32 v{vL16}, 4, v0
    s_mul_i32 s6, s{sW}, 40
    s_mul_i32 s{sA}, s{sRB}, 160
    s_mul_i32 s{sB}, s{sCB}, 160
    s_add_u32 s{sA}, s{sA}, s6
    s_add_u32 s{sB}, s{sB}, s6
    s_lshl_b32 s{sA}, s{sA}, 12
    s_lshl_b32 s{sB}, s{sB}, 12
    s_add_u32 s{sA}, s{sA}, {WS_A}
    s_add_u32 s{sB}, s{sB}, {WS_W}
    s_waitcnt lgkmcnt(0)""")
    srd(a, R_WS, 66, WS_SIZE)
    def loads(k):
        o = []
        for q in range(4):
            o.append(f"buffer_load_dwordx4 {vr(FWb(k,q),4)}, v{vL16}, s[{R_WS}:{R_WS+3}], s{sB} offen offset:{q*1024}")
            o.append(f"buffer_load_dwordx4 {vr(FAb(k,q),4)}, v{vL16}, s[{R_WS}:{R_WS+3}], s{sA} offen offset:{q*1024}")
        return o
    adv = [f"s_add_u32 s{sA}, s{sA}, 4096", f"s_add_u32 s{sB}, s{sB}, 4096"]
    for k in range(7):
        for x in loads(k) + (adv if k < 6 else []): a(x)
    srd(a, R_X, 60, 2 << 20); srd(a, R_T1, 62, 1024); srd(a, R_T2, 64, 4 << 20)
    for i in range(16, 144): a(f"v_mov_b32 v{i}, 0")
    a(f"""v_and_b32 v2, 12, v0
    v_and_b32 v4, 15, v0
    v_add_u32 v2, v2, v4
    v_lshrrev_b32 v3, 4, v0
    v_lshlrev_b32 v4, 2, v2
    v_lshlrev_b32 v5, 3, v3
    v_lshl_add_u32 v6, v2, 10, v5
    v_lshlrev_b32 v7, 1, v6
    s_lshl_b32 s44, s{sRB}, 8
    s_add_u32 s44, s44, {WS_G}
    s_lshr_b32 s6, s{sW}, 1
    s_lshl_b32 s6, s6, 5
    s_and_b32 s7, s{sW}, 1
    s_lshl_b32 s7, s7, 2
    s_add_u32 s6, s6, s7
    s_lshl_b32 s7, s{sRB}, 6
    s_add_u32 s6, s6, s7
    s_lshl_b32 s6, s6, 10
    s_lshl_b32 s46, s{sCB}, 7
    s_add_u32 s47, s6, s46
    s_lshl_b32 s48, s47, 1
    s_mov_b32 s{sCnt}, 4
    s_waitcnt vmcnt(48)""")
    GV, XV, DV = 144, 148, 156
    xl = [f"buffer_load_dword v{GV+tt}, v4, s[{R_WS}:{R_WS+3}], s44 offen offset:{(32*(tt>>1)+4*(tt&1))*4}" for tt in range(4)]
    xl += [f"buffer_load_dwordx2 v[{XV+2*mt}:{XV+2*mt+1}], v6, s[{R_X}:{R_X+3}], s47 offen offset:{32*mt}" for mt in range(4)]
    xl += [f"buffer_load_dwordx2 v[{DV+2*mt}:{DV+2*mt+1}], v5, s[{R_T1}:{R_T1+3}], s46 offen offset:{32*mt}" for mt in range(4)]
    def body(last):
        base = AB if last else AA
        mf = [f"{MF} {vr(acc(base,mt,tt),4)}, {vr(FWb(k,mt),4)}, {vr(FAb(k,tt),4)}, {vr(acc(base,mt,tt),4)}" for k in range(8) for tt in range(4) for mt in range(4)]
        S = Sched(mf)
        for k in range(8):
            b = 16 * k
            if not last or k == 0:
                S.sh[b] += adv[1:]; S.sh[b + 1] += adv[:1]
                for n, x in enumerate(loads(k + 7)): S.gp[b + (n * 13) // 7].append(x)
            elif k == 1:
                for n, x in enumerate(xl): S.gp[b + n].append(x)
            if not last: S.sh[b + (14 if k == 7 else 15)].append("s_waitcnt vmcnt(48)")
            elif k < 7: S.sh[b + 15].append(f"s_waitcnt vmcnt({48 - 8*k + (12 if k >= 1 else 0)})")
        if not last:
            S.sh[120].append(f"s_sub_u32 s{sCnt}, s{sCnt}, 1"); S.sh[122].append(f"s_cmp_lg_u32 s{sCnt}, 0"); S.sh[127].append("s_cbranch_scc1 B_loop")
        S.emit(a)
    a(".p2align 3"); a.label("B_loop")
    body(False); body(True)
    a("s_waitcnt vmcnt(0)")
    OG = 164
    for tt in range(4): a(f"v_mov_b32 v{OG+4*tt}, v{GV+tt}\nv_sub_f32 v{OG+4*tt+2}, 1.0, v{GV+tt}")
    a(f"s_lshl_b32 s6, s{sW}, 12\nv_add_u32 v8, s6, v{vL16}\ns_lshl_b32 s6, s{sW}, 14\nv_add_u32 v9, s6, v{vL16}")
    for tt in range(4):
        for mt in range(4):
            x, y = acc(AA, mt, tt), acc(AB, mt, tt)
            for q in (0, 2): a(f"v_pk_mul_f32 v[{x+q}:{x+q+1}], v[{x+q}:{x+q+1}], v[{OG+4*tt}:{OG+4*tt+1}] op_sel_hi:[1,0]")
            for q in (0, 2): a(f"v_pk_fma_f32 v[{x+q}:{x+q+1}], v[{y+q}:{y+q+1}], v[{OG+4*tt+2}:{OG+4*tt+3}], v[{x+q}:{x+q+1}] op_sel_hi:[1,0,1]")
            a(f"ds_write_b128 v8, v[{x}:{x+3}] offset:{tt*16384+mt*1024}")
    a(f"v_mov_b32 v10, v{OG+2}")
    for tt in range(1, 4): a(f"s_cmp_eq_u32 s{sW}, {tt}\ns_cselect_b64 vcc, -1, 0\nv_cndmask_b32 v10, v10, v{OG+4*tt+2}, vcc")
    SK = 180
    for mt in range(4):
        for q in range(2):
            x, d, o = XV + 2 * mt + q, DV + 2 * mt + q, SK + 4 * mt + 2 * q
            a(f"""v_lshlrev_b32 v{o}, 16, v{x}
            v_lshlrev_b32 v11, 16, v{d}
            v_and_b32 v{o+1}, 0xffff0000, v{x}
            v_and_b32 v12, 0xffff0000, v{d}
            v_mul_f32 v{o}, v{o}, v11
            v_mul_f32 v{o+1}, v{o+1}, v12
            v_mul_f32 v{o}, v{o}, v10
            v_mul_f32 v{o+1}, v{o+1}, v10""")
    a("s_waitcnt lgkmcnt(0)\ns_barrier")
    for mt in range(4):
        for src in range(4): a(f"ds_read_b128 v[{16+16*mt+4*src}:{16+16*mt+4*src+3}], v9 offset:{src*4096+mt*1024}")
    for mt in range(4):
        a(f"s_waitcnt lgkmcnt({12-4*mt})")
        o = SK + 4 * mt
        for src in range(4):
            for q in (0, 2): a(f"v_pk_add_f32 v[{o+q}:{o+q+1}], v[{o+q}:{o+q+1}], v[{16+16*mt+4*src+q}:{16+16*mt+4*src+q+1}]")
        a(f"buffer_store_dwordx4 v[{o}:{o+3}], v7, s[{R_T2}:{R_T2+3}], s48 offen offset:{64*mt}")
    a.label("B_end")
    a("s_endpgm")
    return a
```

```python
import sys, json
from ka3 import *
NAME = "gated_mix__compressed_kv_cla__ssm_conv_s5__prompt"
def build(opt, verbose=False):
    ref = open(f"cdna_kernels/{NAME}.s.ref").read().split("\n")
    hdr = [l for l in ref if l.startswith(";") and "@launch" not in l and "Override" not in l and "grid=ceil" not in l]
    ks = [(NAME + "_kernel", kernel_a(opt), 163840), ("outproj_kernel", kernel_b(opt), 65536)]
    out = hdr + [f"; @launch kernel={n} grid=(256,1,1) block=(256,1,1) lds={l}" for n, _, l in ks]
    out += ['.amdgcn_target "amdgcn-amd-amdhsa--gfx950"', ".text"]
    for n, a, l in ks:
        nn = a.fix_hazards(verbose)
        e = a.check_waits() + a.check_scc()
        print(n[-20:], "instrs", len(a.ins), "nop states", nn, "errors", e, file=sys.stderr)
        assert e == 0
        out += [f".globl {n}", ".p2align 8", f".type {n},@function", f"{n}:", a.text()]
    out += ['.section .rodata,"a"']
    for n, a, l in ks:
        out += [".p2align 6", f".amdhsa_kernel {n}", "  .amdhsa_next_free_vgpr 512", "  .amdhsa_next_free_sgpr 102", "  .amdhsa_accum_offset 256",
                "  .amdhsa_group_segment_fixed_size 0", "  .amdhsa_kernarg_size 152", "  .amdhsa_user_sgpr_count 2",
                "  .amdhsa_user_sgpr_kernarg_segment_ptr 1", "  .amdhsa_system_sgpr_workgroup_id_x 1", ".end_amdhsa_kernel"]
    return "\n".join(out) + "\n"
if __name__ == "__main__":
    path = sys.argv[1]; opt = json.loads(sys.argv[2]) if len(sys.argv) > 2 else {}
    open(path, "w").write(build(opt, opt.get("v", 0)))
```
